```python
import torch

def _softmax(x, axis=-1):
    return torch.softmax(x, dim=axis)
def _gelu(x):
    return torch.nn.functional.gelu(x, approximate="tanh")
def _silu(x):
    return torch.nn.functional.silu(x)
def _sigmoid(x):
    return torch.sigmoid(x)
def _layernorm(x, axis=-1, eps=1e-5):
    m = x.mean(dim=axis, keepdim=True)
    v = x.var(dim=axis, keepdim=True, unbiased=False)
    return (x - m) / torch.sqrt(v + eps)
def _scatter_add(tgt, idx, src, axis=0):
    return tgt.clone().index_add_(axis, idx, src)
def _segment_sum(src, seg, n):
    out = torch.zeros((n,) + src.shape[1:], dtype=src.dtype)
    return out.index_add_(0, seg, src)
def _pad(x, pw):
    flat = tuple(v for pair in reversed(pw) for v in pair)
    return torch.nn.functional.pad(x, flat)

kernel_name = 'recurrent_scan__sliding_local_dilated__glu_gated_glu__prompt'

def setup_inputs():

    _w = (lambda a: (lambda t: t.to(torch.bfloat16) if t.is_floating_point() else t)(torch.as_tensor(a)))
    def _A_setup():
        B, S, D = 1, 2048, 576
        return {
            "x": _w((lambda *s: torch.randn(*s, dtype=torch.bfloat16) * 0.05)(B, S, D)),
            "wqkv": _w((lambda *s: torch.randn(*s, dtype=torch.bfloat16) * 0.05)(D, 3 * D)),
            "wo": _w((lambda *s: torch.randn(*s, dtype=torch.bfloat16) * 0.05)(D, D)),
        }
    _A_in = _A_setup()

    def _B_setup():
        B, S, D, F = 1, 2048, 576, 4608
        return {
            "x": _w((lambda *s: torch.randn(*s, dtype=torch.bfloat16) * 0.05)(B, S, D)),
            "w_gate": _w((lambda *s: torch.randn(*s, dtype=torch.bfloat16) * 0.05)(D, F)),
            "w_up": _w((lambda *s: torch.randn(*s, dtype=torch.bfloat16) * 0.05)(D, F)),
            "w_down": _w((lambda *s: torch.randn(*s, dtype=torch.bfloat16) * 0.05)(F, D)),
        }
    _B_in = _B_setup()

    return {
        "A_x": _A_in["x"],
        "A_wqkv": _A_in["wqkv"],
        "A_wo": _A_in["wo"],
        "B_x": _B_in["x"],
        "B_w_gate": _B_in["w_gate"],
        "B_w_up": _B_in["w_up"],
        "B_w_down": _B_in["w_down"],
    }

def reference(A_x, A_wqkv, A_wo, B_x, B_w_gate, B_w_up, B_w_down):
    def _A_ref(x, wqkv, wo):
        B, S, D = x.shape
        H = 32; Dh = D // H
        W, dil = 8, 2
        qkv = (lambda x, *d: x.permute(*d))((x @ wqkv).reshape(B, S, 3, H, Dh), 2, 0, 3, 1, 4)
        q, k, v = qkv[0], qkv[1], qkv[2]
        scale = Dh ** -0.5
        pos = torch.arange(S)
        off = torch.arange(W) * dil
        idx = pos[:, None] - off[None, :]
        mask = idx >= 0
        idx_c = torch.where(mask, idx, 0).reshape(-1)
        kg = k[:, :, idx_c, :].reshape(B, H, S, W, Dh)
        vg = v[:, :, idx_c, :].reshape(B, H, S, W, Dh)
        logits = torch.einsum("bhsd,bhswd->bhsw", q, kg) * scale
        logits = torch.where(mask[None, None, :, :], logits, -1e9)
        attn = _softmax(logits, axis=-1)
        o = torch.einsum("bhsw,bhswd->bhsd", attn, vg)
        return (lambda x, *d: x.permute(*d))(o, 0, 2, 1, 3).reshape(B, S, D) @ wo

    def _B_ref(x, w_gate, w_up, w_down):
        g = torch.einsum("bsd,df->bsf", x, w_gate)
        u = torch.einsum("bsd,df->bsf", x, w_up)
        h = _sigmoid(g) * u
        return torch.einsum("bsf,fd->bsd", h, w_down)

    x = A_x
    xn = _layernorm(x, axis=-1)
    s = _A_ref(xn, A_wqkv, A_wo)
    g = _silu(_B_ref(xn, B_w_gate, B_w_up, B_w_down))
    return x + s * g
```

```python
import sys, math

NAME = "recurrent_scan__sliding_local_dilated__glu_gated_glu__prompt"
S, D, F = 2048, 576, 4608
XN_OFF = 0
XN_SZ = S*D*2
H_OFF = XN_OFF + XN_SZ
H_SZ = S*F*2
WP_OFF = H_OFF + H_SZ
WP_SZ = 8*81*9216
QKV_OFF = WP_OFF + WP_SZ
QKV_SZ = S*1728*2
O_OFF = QKV_OFF + QKV_SZ + 4096
O_SZ = S*D*2
WS_USED = O_OFF + O_SZ
LOG2E = 1.4426950408889634

import struct
def f32(x): return "0x%08x" % struct.unpack("<I", struct.pack("<f", x))[0]

class Asm:
    def __init__(s): s.l = []
    def __call__(s, *t):
        for x in t: s.l.append("    " + x if not x.endswith(":") else x)
    def text(s): return "\n".join(s.l)

def srd(A, d, lo, hi, size):
    A(f"s_mov_b32 s{d}, {lo}", f"s_mov_b32 s{d+1}, {hi}", f"s_mov_b32 s{d+2}, {size}", f"s_mov_b32 s{d+3}, 0x20000")
def srd_add(A, d, lo, hi, off, size):
    A(f"s_add_u32 s{d}, {lo}, {off}", f"s_addc_u32 s{d+1}, {hi}, 0", f"s_mov_b32 s{d+2}, {size}", f"s_mov_b32 s{d+3}, 0x20000")

def wrap(name, body, vgpr, accum, sgpr=96):
    return f"""
.text
.globl {name}
.p2align 8
.type {name},@function
{name}:
{body}
    s_endpgm
.section .rodata,"a"
.p2align 6
.amdhsa_kernel {name}
  .amdhsa_next_free_vgpr {vgpr}
  .amdhsa_next_free_sgpr {sgpr}
  .amdhsa_accum_offset {accum}
  .amdhsa_group_segment_fixed_size 0
  .amdhsa_kernarg_size 80
  .amdhsa_user_sgpr_count 2
  .amdhsa_user_sgpr_kernarg_segment_ptr 1
  .amdhsa_system_sgpr_workgroup_id_x 1
.end_amdhsa_kernel
"""

def gen_k0():
    A = Asm()
    A("s_cmp_ge_u32 s2, 256", "s_cbranch_scc1 K0_end")
    A("s_load_dwordx2 s[4:5], s[0:1], 0", "s_load_dwordx2 s[6:7], s[0:1], 16",
      "s_load_dwordx2 s[8:9], s[0:1], 48", "s_load_dwordx2 s[10:11], s[0:1], 72")
    A("v_lshrrev_b32 v1, 6, v0", "v_and_b32 v0, 63, v0", "v_readfirstlane_b32 s24, v1")
    A("v_and_b32 v2, 7, v0", "v_lshrrev_b32 v3, 3, v0")
    A("s_lshl_b32 s25, s2, 3")
    A("v_add_u32 v4, s25, v2", "v_mul_u32_u24 v4, 1152, v4")
    A("v_lshl_add_u32 v5, v3, 4, v4")
    A("s_lshl_b32 s26, s24, 7")
    A("s_lshl_b32 s27, s2, 2", "s_add_u32 s27, s27, s24")
    A("s_lshr_b32 s28, s27, 3", "s_and_b32 s29, s27, 7")
    A("s_waitcnt lgkmcnt(0)")
    srd(A, 12, "s4", "s5", XN_SZ)
    srd(A, 16, "s10", "s11", WS_USED)
    A("s_cmp_lt_u32 s28, 72")
    A("s_cselect_b32 s20, s8, s6", "s_cselect_b32 s21, s9, s7", f"s_mov_b32 s22, {D*D*2}", f"s_cselect_b32 s22, {F*D*2}, s22", "s_mov_b32 s23, 0x20000")
    A("buffer_load_ushort v6, v4, s[12:15], 0 offen")
    A("buffer_load_dwordx4 v[8:11], v5, s[12:15], s26 offen")
    A("buffer_load_dwordx4 v[12:15], v5, s[12:15], s26 offen offset:512")
    A("buffer_load_dwordx4 v[16:19], v5, s[12:15], 0 offen offset:1024")
    A("s_cmp_ge_u32 s27, 648", "s_cbranch_scc1 K0_nodma")
    A("v_lshrrev_b32 v20, 5, v0", "v_lshlrev_b32 v20, 5, v20")
    A("v_and_b32 v21, 3, v3", "v_lshl_add_u32 v20, v21, 2, v20")
    A("v_and_b32 v21, 3, v2", "v_add_u32 v20, v20, v21")
    A("v_lshrrev_b32 v21, 2, v2", "v_lshl_add_u32 v20, v21, 4, v20")
    A("s_lshl_b32 s30, s28, 6", "v_add_u32 v20, s30, v20")
    A("s_sub_u32 s30, s28, 72", "s_lshl_b32 s30, s30, 3", "v_add_u32 v22, s30, v3")
    A("v_mul_u32_u24 v23, 57, v22", "v_lshrrev_b32 v23, 9, v23")
    A("v_mul_u32_u24 v24, 9, v23", "v_sub_u32 v24, v22, v24")
    A("v_mul_u32_u24 v23, 72, v23")
    A("v_lshrrev_b32 v25, 1, v24", "v_mul_u32_u24 v25, 18, v25", "v_and_b32 v26, 1, v24", "v_lshl_add_u32 v25, v26, 3, v25", "v_add_u32 v25, v25, v2")
    A("v_lshrrev_b32 v26, 1, v2", "v_mul_u32_u24 v26, 18, v26", "v_and_b32 v27, 1, v2", "v_add3_u32 v26, v26, v27, 16")
    A("v_cmp_eq_u32 vcc, 8, v24", "s_nop 1", "v_cndmask_b32 v25, v25, v26, vcc", "v_add_u32 v25, v25, v23")
    A("s_cmp_lt_u32 s28, 72", "s_cselect_b64 vcc, -1, 0", "s_nop 1", "v_cndmask_b32 v20, v25, v20, vcc")
    A("v_mul_u32_u24 v20, 1152, v20", "s_mul_i32 s30, s29, 144")
    A("s_mul_i32 s31, s24, 9216", "s_add_u32 s31, s31, 1024")
    for ch in range(9):
        A(f"s_add_u32 m0, s31, {ch*1008}", "s_nop 0", f"buffer_load_dwordx4 v20, s[20:23], s30 offen offset:{ch*16} lds")
    A("s_waitcnt vmcnt(9)", "s_branch K0_ln")
    A("K0_nodma:", "s_waitcnt vmcnt(0)")
    A("K0_ln:")
    A("v_lshlrev_b32 v6, 16, v6")
    for i in range(12):
        A(f"v_lshlrev_b32 v{32+2*i}, 16, v{8+i}", f"v_and_b32 v{33+2*i}, 0xffff0000, v{8+i}")
    A("v_mov_b32 v28, 0", "v_mov_b32 v29, 0")
    for i in range(16):
        A(f"v_sub_f32 v30, v{32+i}, v6", "v_add_f32 v28, v28, v30", "v_fmac_f32 v29, v30, v30")
    A("s_cmp_lg_u32 s24, 0", "s_cbranch_scc1 K0_skip3")
    for i in range(16, 24):
        A(f"v_sub_f32 v30, v{32+i}, v6", "v_add_f32 v28, v28, v30", "v_fmac_f32 v29, v30, v30")
    A("K0_skip3:")
    A("s_nop 1")
    A("v_add_f32_dpp v28, v28, v28 row_ror:8 row_mask:0xf bank_mask:0xf", "v_add_f32_dpp v29, v29, v29 row_ror:8 row_mask:0xf bank_mask:0xf")
    for op in ("v_permlane16_swap_b32", "v_permlane32_swap_b32"):
        A("v_mov_b32 v30, v28", "v_mov_b32 v31, v29", "s_nop 1")
        A(f"{op} v28, v30", f"{op} v29, v31", "s_nop 1")
        A("v_add_f32 v28, v28, v30", "v_add_f32 v29, v29, v31")
    A("v_lshlrev_b32 v30, 5, v2", "s_lshl_b32 s32, s24, 3", "v_add_u32 v31, s32, v30")
    A("ds_write_b64 v31, v[28:29]")
    A("s_waitcnt lgkmcnt(0)", "s_barrier")
    A("ds_read_b128 v[56:59], v30", "ds_read_b128 v[60:63], v30 offset:16")
    A("s_waitcnt lgkmcnt(0)")
    A("v_add_f32 v28, v56, v58", "v_add_f32 v29, v57, v59", "v_add_f32 v30, v60, v62", "v_add_f32 v31, v61, v63")
    A("v_add_f32 v28, v28, v30", "v_add_f32 v29, v29, v31")
    A(f"v_mul_f32 v28, {f32(1/576)}, v28", f"v_mul_f32 v29, {f32(1/576)}, v29")
    A("v_fma_f32 v29, -v28, v28, v29", "v_max_f32 v29, 0, v29", "v_add_f32 v28, v28, v6")
    A("v_cvt_pk_bf16_f32 v30, v28, v29", "v_lshlrev_b32 v28, 16, v30", "v_and_b32 v29, 0xffff0000, v30")
    A(f"v_add_f32 v29, {f32(1e-5)}, v29", "v_cvt_pk_bf16_f32 v29, v29, v29", "v_lshlrev_b32 v29, 16, v29")
    A("v_sqrt_f32 v29, v29", "s_nop 0", "v_cvt_pk_bf16_f32 v29, v29, v29", "v_lshlrev_b32 v29, 16, v29")
    A("v_rcp_f32 v29, v29", "s_nop 0")
    for i in range(12):
        a, b = 32+2*i, 33+2*i
        A(f"v_sub_f32 v{a}, v{a}, v28", f"v_sub_f32 v{b}, v{b}, v28", f"v_cvt_pk_bf16_f32 v30, v{a}, v{b}")
        A(f"v_lshlrev_b32 v{a}, 16, v30", f"v_and_b32 v{b}, 0xffff0000, v30")
        A(f"v_mul_f32 v{a}, v{a}, v29", f"v_mul_f32 v{b}, v{b}, v29", f"v_cvt_pk_bf16_f32 v{8+i}, v{a}, v{b}")
    A("v_lshrrev_b32 v30, 2, v3", "v_lshlrev_b32 v30, 12, v30", "v_and_b32 v31, 3, v3", "v_lshl_add_u32 v30, v31, 8, v30", "v_lshl_add_u32 v30, v2, 4, v30")
    A("s_lshr_b32 s32, s2, 3", "s_mul_i32 s32, s32, 73728")
    A("s_lshr_b32 s33, s2, 1", "s_and_b32 s33, s33, 3", "s_lshl_b32 s33, s33, 10", "s_add_u32 s32, s32, s33")
    A("s_and_b32 s33, s2, 1", "s_lshl_b32 s33, s33, 7", "s_add_u32 s32, s32, s33")
    A(f"s_add_u32 s32, s32, {XN_OFF}")
    A("s_lshl_b32 s33, s24, 13", "s_add_u32 s33, s33, s32", "s_add_u32 s34, s33, 32768", "s_add_u32 s35, s32, 65536")
    A("buffer_store_dwordx4 v[8:11], v30, s[16:19], s33 offen sc1")
    A("buffer_store_dwordx4 v[12:15], v30, s[16:19], s34 offen sc1")
    A("s_cmp_lg_u32 s24, 0", "s_cbranch_scc1 K0_skip4")
    A("buffer_store_dwordx4 v[16:19], v30, s[16:19], s35 offen sc1")
    A("K0_skip4:")
    A("s_cmp_ge_u32 s27, 648", "s_cbranch_scc1 K0_end")
    A("v_lshrrev_b32 v20, 4, v0", "v_lshlrev_b32 v20, 7, v20")
    A("v_bfe_u32 v21, v0, 2, 2", "v_lshl_add_u32 v20, v21, 4, v20")
    A("v_add_u32 v20, s31, v20")
    A("v_and_b32 v21, 3, v0", "v_lshl_add_u32 v22, v21, 10, v20")
    A("v_lshrrev_b32 v23, 1, v21", "v_lshl_add_u32 v23, v23, 9, v20", "v_and_b32 v21, 1, v21", "v_lshl_add_u32 v23, v21, 3, v23")
    A("s_waitcnt vmcnt(0)")
    fr = 0
    for s in range(2):
        for be in range(4):
            off = (be >> 1)*4096 + 8*(be & 1) + s*512
            r = 24 + fr*4
            A(f"ds_read_b64_tr_b16 v[{r}:{r+1}], v22 offset:{off}", f"ds_read_b64_tr_b16 v[{r+2}:{r+3}], v22 offset:{off+64}")
            fr += 1
            if fr == 4: A("s_waitcnt lgkmcnt(0)")
    A("ds_read_b64_tr_b16 v[56:57], v23 offset:8192", "ds_read_b64_tr_b16 v[58:59], v23 offset:8256")
    A("s_mul_i32 s32, s29, 81", "s_add_u32 s32, s32, s28", "s_mul_i32 s32, s32, 9216", f"s_add_u32 s32, s32, {WP_OFF}")
    A("s_add_u32 s33, s32, 4096", "s_add_u32 s34, s32, 8192")
    A("v_lshlrev_b32 v20, 4, v0")
    A("s_waitcnt lgkmcnt(0)")
    for f in range(9):
        A(f"buffer_store_dwordx4 v[{24+4*f}:{27+4*f}], v20, s[16:19], s{32+f//4} offen offset:{(f%4)*1024} sc1")
    A("K0_end:")
    return wrap("k0_kernel", A.text(), 64, 64), 1024 + 4*9216

class VM:
    def __init__(s): s.q = []
    def issue(s, tag): s.q.append(tag)
    def wait_for(s, pred):
        idx = max((i for i, t in enumerate(s.q) if pred(t)), default=-1)
        n = len(s.q) - 1 - idx
        assert n <= 63, n
        return n

def gen_k1(DL=4, LOOK=3):
    A = Asm()
    XV = 0
    ACC = 32
    RING = 192
    NB = 5
    STG = 212
    vAd = [228, 229, 230, 231]
    vAo, vAq = 232, 233
    vDg, vDo, vDq = 234, 235, 236
    vL16, vHo, vQs = 237, 238, 239
    T = 240
    sG, sU, sQ, sO, sXN, sH, sQK = 12, 16, 20, 24, 28, 32, 36
    sWave, sLdsW, sOffG, sOffX, sOffO, sOffQ, sT, sHo, sLdsO = 40, 41, 42, 43, 44, 45, 46, 48, 49
    def xreg(s, mb):
        return f"a[{s*16+mb*4}:{s*16+mb*4+3}]" if s < 16 else f"v[{XV+(s-16)*16+mb*4}:{XV+(s-16)*16+mb*4+3}]"
    A("s_cmp_ge_u32 s2, 256", "s_cbranch_scc1 K1_end")
    A("s_load_dwordx2 s[4:5], s[0:1], 8", "s_load_dwordx4 s[8:11], s[0:1], 32", "s_load_dwordx2 s[6:7], s[0:1], 72")
    A(f"v_lshrrev_b32 v{T}, 6, v0", f"v_and_b32 v{T+1}, 63, v0", f"v_readfirstlane_b32 s{sWave}, v{T}")
    ln = T+1
    A(f"v_lshlrev_b32 v{vL16}, 4, v{ln}")
    A("s_and_b32 s50, s2, 7", "s_lshr_b32 s51, s2, 3", "s_lshr_b32 s52, s51, 3", "s_and_b32 s51, s51, 7")
    q, r, c, sw, ba = T+2, T+3, T+4, T+5, T+6
    A(f"v_lshrrev_b32 v{q}, 4, v{ln}", f"v_bfe_u32 v{r}, v{ln}, 2, 2", f"v_and_b32 v{c}, 3, v{ln}")
    A(f"v_lshrrev_b32 v{sw}, 1, v{r}", f"v_and_b32 v{ba}, 1, v{q}", f"v_lshl_add_u32 v{sw}, v{ba}, 1, v{sw}")
    A(f"v_lshl_add_u32 v{ba}, v{q}, 3, v{r}", f"v_lshlrev_b32 v{ba}, 7, v{ba}")
    for seg in range(4):
        A(f"v_xor_b32 v{T+7}, {seg}, v{sw}", f"v_lshl_add_u32 v{T+7}, v{T+7}, 5, v{ba}", f"v_lshl_add_u32 v{vAd[seg]}, v{c}, 3, v{T+7}")
    A(f"v_lshlrev_b32 v{T+7}, 1, v{sw}", f"v_xor_b32 v{T+7}, v{T+7}, v{c}", f"v_lshl_add_u32 v{vAq}, v{T+7}, 4, v{ba}")
    A(f"v_and_b32 v{T+7}, 1, v{q}", f"v_lshl_add_u32 v{T+7}, v{T+7}, 2, v{r}", f"v_lshrrev_b32 v{T+8}, 1, v{q}", f"v_lshl_add_u32 v{T+7}, v{T+8}, 4, v{T+7}")
    A(f"v_lshlrev_b32 v{T+7}, 5, v{T+7}", f"v_lshl_add_u32 v{vAo}, v{c}, 3, v{T+7}")
    A(f"v_lshrrev_b32 v{T+7}, 3, v{ln}", f"v_and_b32 v{T+8}, 7, v{ln}", f"v_and_b32 v{T+9}, 2, v{T+7}")
    A(f"s_and_b32 s{sT}, s{sWave}, 1", f"s_lshl_b32 s{sT}, s{sT}, 2", f"v_or_b32 v{T+9}, s{sT}, v{T+9}")
    A(f"v_xor_b32 v{T+8}, v{T+8}, v{T+9}", f"v_lshlrev_b32 v{T+8}, 4, v{T+8}")
    A(f"s_lshl_b32 s{sT}, s{sWave}, 3", f"v_add_u32 v{T+7}, s{sT}, v{T+7}")
    A(f"v_mul_u32_u24 v{vDg}, 9216, v{T+7}", f"v_add_u32 v{vDg}, v{vDg}, v{T+8}")
    A(f"v_mul_u32_u24 v{vDq}, 3456, v{T+7}", f"v_add_u32 v{vDq}, v{vDq}, v{T+8}")
    A(f"v_lshrrev_b32 v{T+7}, 1, v{ln}", f"v_and_b32 v{T+8}, 0x13, v{T+7}")
    A(f"v_bfe_u32 v{T+9}, v{T+7}, 2, 1", f"v_lshl_add_u32 v{T+8}, v{T+9}, 3, v{T+8}")
    A(f"v_bfe_u32 v{T+9}, v{T+7}, 3, 1", f"v_lshl_add_u32 v{T+8}, v{T+9}, 2, v{T+8}")
    A(f"v_mul_u32_u24 v{vDo}, 9216, v{T+8}", f"v_and_b32 v{T+9}, 1, v{ln}", f"v_lshl_add_u32 v{vDo}, v{T+9}, 4, v{vDo}")
    A(f"v_and_b32 v{T+7}, 15, v{ln}", f"v_mul_u32_u24 v{vQs}, 3456, v{T+7}", f"v_lshl_add_u32 v{vQs}, v{q}, 4, v{vQs}")
    A(f"s_and_b32 s{sT}, s52, 1", f"s_lshl_b32 s{sT}, s{sT}, 3", f"v_add_u32 v{vHo}, s{sT}, v{vL16}")
    A("s_waitcnt lgkmcnt(0)")
    A("s_mul_i32 s53, s50, 9", "s_lshl_b32 s54, s52, 1", "s_add_u32 s54, s54, s53")
    A("s_lshl_b32 s55, s54, 7")
    A(f"s_sub_u32 s56, {D*F*2}, s55")
    srd_add(A, sG, "s8", "s9", "s55", "s56"); srd_add(A, sU, "s10", "s11", "s55", "s56")
    A("s_add_u32 s57, s53, 8", "s_lshl_b32 s58, s57, 7", "s_lshl_b32 s59, s52, 5", "s_add_u32 s58, s58, s59")
    A(f"s_bitcmp1_b32 s{sWave}, 0", "s_cselect_b32 s60, s10, s8", "s_cselect_b32 s61, s11, s9")
    A(f"s_sub_u32 s56, {D*F*2}, s58")
    srd_add(A, sO, "s60", "s61", "s58", "s56")
    A(f"s_lshr_b32 s{sOffO}, s{sWave}, 1", f"s_mul_i32 s{sOffO}, s{sOffO}, {32*9216}")
    A("s_lshl_b32 s59, s52, 3", "s_add_u32 s59, s59, s50", "s_min_u32 s60, s59, 26", "s_lshl_b32 s60, s60, 7")
    A(f"s_sub_u32 s56, {D*1728*2}, s60")
    srd_add(A, sQ, "s4", "s5", "s60", "s56")
    A(f"s_lshl_b32 s61, s51, 2", f"s_add_u32 s61, s61, s{sWave}")
    A(f"s_mul_i32 s62, s61, 73728", f"s_add_u32 s62, s62, {XN_OFF}")
    srd_add(A, sXN, "s6", "s7", "s62", 73728)
    A(f"s_mul_i32 s62, s61, {144*4096}", f"s_add_u32 s62, s62, {H_OFF}")
    srd_add(A, sH, "s6", "s7", "s62", 144*4096)
    A(f"s_mul_i32 s62, s61, {64*3456}", f"s_add_u32 s62, s62, {QKV_OFF}", "s_add_u32 s62, s62, s60")
    A("s_cmp_lt_u32 s59, 27", f"s_cselect_b32 s63, {64*3456}, 0")
    srd_add(A, sQK, "s6", "s7", "s62", "s63")
    A(f"s_lshl_b32 s{sHo}, s54, 13")
    A(f"s_lshl_b32 s64, s57, 1", "s_lshr_b32 s65, s52, 1", "s_add_u32 s64, s64, s65", "s_lshl_b32 s64, s64, 12")
    A(f"s_lshl_b32 s{sLdsW}, s{sWave}, 10")
    for k in range(1, 4): A(f"s_mov_b32 s{66+k}, {k*16*3456}")

    BUF = [0, 73728]
    vm = VM()
    def dmaG(grp, s, mat):
        lds = BUF[s // 9] + (s % 9)*8192 + mat*4096
        o = []
        if mat == 0: o.append((f"s_mov_b32 s{sOffG}, {s*32*9216 + grp*128}", None))
        o.append((f"s_add_u32 m0, s{sLdsW}, {lds}", None))
        o.append((f"buffer_load_dwordx4 v{vDg}, s[{(sG,sU)[mat]}:{(sG,sU)[mat]+3}], s{sOffG} offen lds", ("G", grp, s)))
        return o
    def ldX(s):
        o = [(f"s_mov_b32 s{sOffX}, {s*4096}", None)]
        for mb in range(4):
            o.append((f"buffer_load_dwordx4 {xreg(s, mb)}, v{vL16}, s[{sXN}:{sXN+3}], s{sOffX} offen offset:{mb*1024}", ("X", s)))
        return o
    def dmaO(d):
        return [(f"s_add_u32 s{sT}, s{sOffO}, {d*64*9216}", None), (f"s_add_u32 m0, s{sLdsW}, {BUF[0] + d*4096}", None),
                (f"buffer_load_dwordx4 v{vDo}, s[{sO}:{sO+3}], s{sT} offen lds", ("O", d))]
    QL = BUF[0] + 36864
    def dmaQ(s):
        return [(f"s_mov_b32 s{sOffQ}, {s*32*3456}", None), (f"s_add_u32 m0, s{sLdsW}, {QL + s*4096}", None),
                (f"buffer_load_dwordx4 v{vDq}, s[{sQ}:{sQ+3}], s{sOffQ} offen lds", ("Q", s))]
    def emit_vm(ops):
        for ins, tag in ops:
            A(ins)
            if tag is not None: vm.issue(tag)

    frags = []
    def acc(set_, half): return ACC + set_*32 + half*16
    def addfrag(areg, off, second, a, s, first): frags.append(dict(areg=areg, off=off, second=second, acc=a, s=s, first=first, pre=[]))
    marks = {}
    for s in range(18):
        marks[("G1", s)] = len(frags)
        for p in range(4):
            for mat in range(2):
                addfrag(vAd[p], BUF[s//9] + (s % 9)*8192 + mat*4096, 512, acc(p, mat), s, s == 0)
    g2set = [4, 0, 1, 2]
    for hf in range(2):
        for p in range(4):
            marks[("G2", hf, p)] = len(frags)
            for s in range(hf*9, hf*9+9):
                for mat in range(2):
                    addfrag(vAd[p], BUF[hf] + (s % 9)*8192 + mat*4096, 512, acc(g2set[p], mat), s, s == 0)
    marks["O"] = len(frags)
    for s in range(18):
        for mat in range(2):
            addfrag(vAo, BUF[0] + s*2048 + mat*1024, 256, acc(3, mat), s, s == 0)
    qset = [4, 0]
    for P in range(2):
        marks[("Q", P)] = len(frags)
        for s in range(18):
            for be in range(2):
                addfrag(vAq, QL + s*4096 + be*8, 512, acc(qset[P], be), s, s == 0)
    marks["end"] = len(frags)
    NF = len(frags)
    sync = {}
    for s in range(0, 18, 2):
        sync[marks[("G1", s)]] = (lambda t, s=s: (t[0] == "X" and t[1] <= s+1) or (t[0] == "G" and t[1] == 0 and t[2] <= s+1))
    sync[marks[("G2", 0, 0)]] = lambda t: t[0] == "G" and t[1] == 1 and t[2] < 9
    sync[marks[("G2", 1, 0)]] = lambda t: t[0] == "G" and t[1] == 1
    sync[marks["O"]] = lambda t: t[0] == "O" or (t[0] == "Q" and t[1] < 9)
    sync[marks[("Q", 0)]] = lambda t: t[0] == "Q"
    frags[marks[("Q", 1)]]["pre"].append(f"v_xor_b32 v{vAq}, 64, v{vAq}")

    vmsched = {}
    def put(slot, ops): vmsched.setdefault(slot, []).extend(ops)
    pro = []
    LK = LOOK + 1
    for s in range(18):
        ops = [dmaG(0, s, 0), dmaG(0, s, 1)] + [ldX(s)[:2]] + [[o] for o in ldX(s)[2:]]
        if s < LK: pro += [x for o in ops for x in o]
        else:
            base = marks[("G1", s - LK)]
            for k, o in enumerate(ops): put(base + k, o)
    t0 = marks[("G1", 18 - LK)]
    lst = [dmaG(1, s, m) for s in range(9) for m in range(2)]
    slots = [marks[("G1", s)] + k for s in range(11, 18 - LK) for k in (6, 7)] + list(range(t0, t0 + 40))
    for o, sl in zip(lst, slots): put(sl, o)
    lst = [dmaG(1, s, m) for s in range(9, 18) for m in range(2)]
    for k, o in enumerate(lst): put(marks[("G2", 0, 0)] + 2 + 2*k, o)
    lst = [dmaO(d) for d in range(9)] + [dmaQ(s) for s in range(9)]
    for k, o in enumerate(lst): put(marks[("G2", 1, 0)] + 2 + 2*k, o)
    lst = [dmaQ(s) for s in range(9, 18)]
    for k, o in enumerate(lst): put(marks["O"] + 2 + 2*k, o)

    NL2E = f32(-LOG2E)
    def epi_gate(set_, sub, store):
        o = []
        for mb in range(4):
            g = acc(set_, 0) + mb*4; u = acc(set_, 1) + mb*4
            for i in range(4): o.append((f"v_mul_f32 v{g+i}, {NL2E}, v{g+i}", 1, None))
            for i in range(4): o.append((f"v_exp_f32 v{g+i}, v{g+i}", 2, None))
            for i in range(4): o.append((f"v_add_f32 v{g+i}, 1.0, v{g+i}", 1, None))
            for i in range(4): o.append((f"v_rcp_f32 v{g+i}, v{g+i}", 2, None))
            for i in range(4): o.append((f"v_mul_f32 v{u+i}, v{g+i}, v{u+i}", 1, None))
            d = STG + mb*4 + sub*2
            o.append((f"v_cvt_pk_bf16_f32 v{d}, v{u}, v{u+1}", 1, None)); o.append((f"v_cvt_pk_bf16_f32 v{d+1}, v{u+2}, v{u+3}", 1, None))
            if store is not None:
                if store[0] == "full":
                    if mb == 0: o.append((f"s_add_u32 s{sT+1}, s{sHo}, {store[1]}", 1, None))
                    o.append((f"buffer_store_dwordx4 v[{STG+mb*4}:{STG+mb*4+3}], v{vL16}, s[{sH}:{sH+3}], s{sT+1} offen offset:{mb*1024} sc1", 1, ("S",)))
                else:
                    o.append((f"buffer_store_dwordx2 v[{d}:{d+1}], v{vHo}, s[{sH}:{sH+3}], s64 offen offset:{mb*1024} sc1", 1, ("S",)))
        return o
    def epi_q(set_, P):
        o = []
        for mb in range(4):
            a0 = acc(set_, 0) + mb*4; a1 = acc(set_, 1) + mb*4; d = STG + mb*4
            o.append((f"v_cvt_pk_bf16_f32 v{d}, v{a0}, v{a0+1}", 1, None)); o.append((f"v_cvt_pk_bf16_f32 v{d+1}, v{a0+2}, v{a0+3}", 1, None))
            o.append((f"v_cvt_pk_bf16_f32 v{d+2}, v{a1}, v{a1+1}", 1, None)); o.append((f"v_cvt_pk_bf16_f32 v{d+3}, v{a1+2}, v{a1+3}", 1, None))
            so = "0" if mb == 0 else f"s{66+mb}"
            o.append((f"buffer_store_dwordx4 v[{d}:{d+3}], v{vQs}, s[{sQK}:{sQK+3}], {so} offen offset:{P*64} sc1", 1, ("S",)))
        return o
    g = lambda hf, p: marks[("G2", hf, p)]
    epis = [
        (g(0,0)+1, g(0,1), epi_gate(0, 0, None)),
        (g(0,1), g(0,2), epi_gate(1, 1, ("full", 0))),
        (g(0,2), g(0,3), epi_gate(2, 0, None)),
        (g(0,3), g(1,1), epi_gate(3, 1, ("full", 4096))),
        (g(1,1)+2, g(1,1)+30, epi_gate(4, 0, None)),
        (g(1,1)+30, g(1,1)+58, epi_gate(0, 1, ("full", 8192))),
        (g(1,1)+58, g(1,1)+86, epi_gate(1, 0, None)),
        (g(1,1)+86, g(1,1)+114, epi_gate(2, 1, ("full", 12288))),
        (g(1,1)+114, g(1,1)+142, epi_gate(3, 0, ("half",))),
        (g(1,1)+142, NF, epi_q(4, 0)),
    ]
    assert g(1,1)+30 >= g(1,2)+2 and g(1,1)+58 >= g(1,3)+2 and g(1,1)+86 >= marks["O"]+2 and g(1,1)+114 >= marks[("Q",0)]+2
    assert g(1,1)+30 <= marks[("Q",0)] and g(1,1)+58 <= marks[("Q",1)] and g(1,1)+142 >= marks[("Q",1)]+2
    episched = {}
    for st, en, ops in epis:
        tot = sum(c for _, c, _ in ops); cum = 0
        for ins, c_, tag in ops:
            sl = st + int(cum * (en - st) / tot); cum += c_
            episched.setdefault(sl, []).append((ins, c_, tag))

    base = {}
    def reads(t):
        fr = frags[t]; o = list(fr["pre"])
        if t in sync:
            o.append(("SYNC", sync[t]))
        b = base.get(fr["areg"], 0)
        if not (0 <= fr["off"] - b and fr["off"] - b + fr["second"] <= 65535):
            nb = (fr["off"] // 32768) * 32768
            dlt = nb - b
            o.append(f"v_add_u32 v{fr['areg']}, {dlt & 0xffffffff}, v{fr['areg']}"); base[fr["areg"]] = b = nb
        r_ = RING + (t % NB)*4
        o.append(f"ds_read_b64_tr_b16 v[{r_}:{r_+1}], v{fr['areg']} offset:{fr['off']-b}")
        o.append(f"ds_read_b64_tr_b16 v[{r_+2}:{r_+3}], v{fr['areg']} offset:{fr['off']-b+fr['second']}")
        return o
    def emit_reads(t):
        for x in reads(t):
            if isinstance(x, tuple):
                A(f"s_waitcnt vmcnt({vm.wait_for(x[1])})", "s_barrier")
            else: A(x)
    def fix(ops):
        out = []
        for k, (ins, tag) in enumerate(ops):
            if ins.endswith(" lds") and out and "m0" in out[-1][0]:
                if len(out) >= 2 and out[-2][1] is None and "m0" not in out[-2][0] and out[-2][0].startswith("s_"):
                    out[-1], out[-2] = out[-2], out[-1]
                else: out.append(("s_nop 0", None))
            out.append((ins, tag))
        return out
    emit_vm(fix(pro))
    for t in range(DL): emit_reads(t)
    for t in range(NF):
        fr = frags[t]
        rem = min(DL - 1, NF - 1 - t)
        A(f"s_waitcnt lgkmcnt({2*rem})")
        r_ = RING + (t % NB)*4
        side = [(i, 1, tg) for i, tg in fix(vmsched.get(t, []))] + episched.get(t, [])
        tot = sum(c_ for _, c_, _ in side)
        gaps = [[], [], []]; cum = 0
        for it in side:
            gi = min(2, int(cum * 3 / max(tot, 1))) if tot > 2 else 0
            gaps[gi].append(it); cum += it[1]
        for mb in range(4):
            a = fr["acc"] + mb*4
            cc = "0" if fr["first"] else f"v[{a}:{a+3}]"
            A(f"v_mfma_f32_16x16x32_bf16 v[{a}:{a+3}], v[{r_}:{r_+3}], {xreg(fr['s'], mb)}, {cc}")
            if mb == 0:
                if t + DL < NF: emit_reads(t + DL)
            else:
                for ins, c_, tag in gaps[mb-1]:
                    A(ins)
                    if tag is not None: vm.issue(tag)
    A("s_nop 7")
    for ins, c_, tag in epi_q(0, 1): A(ins)
    A("K1_end:")
    return wrap("k1_kernel", A.text(), 512, 256), 147456

def ab_decode(A, sa, sb, t0):
    A(f"s_and_b32 s{sa}, s2, 3", f"s_lshl_b32 s{sa}, s{sa}, 3", f"s_lshr_b32 s{t0}, s2, 3", f"s_and_b32 s{t0+1}, s{t0}, 7", f"s_add_u32 s{sa}, s{sa}, s{t0+1}")
    A(f"s_and_b32 s{sb}, s2, 4", f"s_lshr_b32 s{t0}, s{t0}, 3", f"s_add_u32 s{sb}, s{sb}, s{t0}")

def gen_ka():
    A = Asm()
    A("s_cmp_ge_u32 s2, 256", "s_cbranch_scc1 KA_end")
    A("s_load_dwordx2 s[6:7], s[0:1], 72")
    A("v_lshrrev_b32 v1, 6, v0", "v_and_b32 v0, 63, v0", "v_readfirstlane_b32 s24, v1")
    ab_decode(A, 20, 21, 22)
    A("s_lshl_b32 s25, s20, 6", "s_sub_u32 s26, s25, 14")
    for k in range(4):
        A(f"v_add_u32 v2, {64*k}, v0", "v_mul_u32_u24 v3, 171, v2", "v_lshrrev_b32 v3, 9, v3")
        A("v_mul_u32_u24 v11, 3, v3", "v_sub_u32 v2, v2, v11", "v_lshlrev_b32 v2, 4, v2")
        A(f"v_add_u32 v11, s26, v3", "v_max_i32 v11, 0, v11", "v_min_i32 v11, 2047, v11", f"v_mul_u32_u24 v11, 3456, v11", f"v_add_u32 v{4+k}, v11, v2")
        if k < 3: A(f"v_add_u32 v11, s25, v3", f"v_mul_u32_u24 v11, 3456, v11", f"v_add_u32 v{8+k}, v11, v2")
    A("s_lshl_b32 s27, s21, 2", "s_add_u32 s27, s27, s24", "s_mul_i32 s27, s27, 36")
    A("s_add_u32 s28, s27, 1152", "s_add_u32 s29, s27, 2304")
    A("s_mul_i32 s30, s24, 11264")
    A("s_waitcnt lgkmcnt(0)")
    srd_add(A, 12, "s6", "s7", QKV_OFF, QKV_SZ + 4096)
    A(f"s_mul_i32 s31, s20, 73728", f"s_add_u32 s31, s31, {O_OFF}")
    srd_add(A, 16, "s6", "s7", "s31", 73728)
    for k in range(3): A(f"s_add_u32 m0, s30, {k*1024}", "s_nop 0", f"buffer_load_dwordx4 v{8+k}, s[12:15], s27 offen lds")
    for k in range(4): A(f"s_add_u32 m0, s30, {3072+k*1024}", "s_nop 0", f"buffer_load_dwordx4 v{4+k}, s[12:15], s28 offen lds")
    for k in range(4): A(f"s_add_u32 m0, s30, {7168+k*1024}", "s_nop 0", f"buffer_load_dwordx4 v{4+k}, s[12:15], s29 offen lds")
    A("v_mul_u32_u24 v2, 48, v0", "v_add_u32 v2, s30, v2")
    A("v_add_u32 v3, s25, v0")
    Q, KB, L = 12, 24, 112
    def rd(dst, off):
        A(f"ds_read_b128 v[{dst}:{dst+3}], v2 offset:{off}", f"ds_read_b128 v[{dst+4}:{dst+7}], v2 offset:{off+16}", f"ds_read_b32 v{dst+8}, v2 offset:{off+32}")
    A("s_waitcnt vmcnt(4)")
    rd(Q, 0)
    for w in range(4): rd(KB + w*10, 3072 + (14 - 2*w)*48)
    A("s_waitcnt lgkmcnt(0)")
    for w in range(4, 8): rd(KB + w*10, 3072 + (14 - 2*w)*48)
    def dots(ws):
        for i in range(9):
            for w in ws:
                A(f"v_dot2_f32_bf16 v{L+w}, v{Q+i}, v{KB+w*10+i}, {'0' if i == 0 else 'v%d' % (L+w)}")
    dots(range(4))
    A("s_waitcnt lgkmcnt(0) vmcnt(0)")
    for w in range(4): rd(KB + w*10, 7168 + (14 - 2*w)*48)
    dots(range(4, 8))
    A("s_waitcnt lgkmcnt(0)")
    for w in range(4, 8): rd(KB + w*10, 7168 + (14 - 2*w)*48)
    A(f"v_mov_b32 v11, {f32(-1e30)}")
    for w in range(1, 8):
        A(f"v_cmp_le_u32 vcc, {2*w}, v3", "s_nop 1", f"v_cndmask_b32 v{L+w}, v11, v{L+w}, vcc")
    A(f"v_max3_f32 v11, v{L}, v{L+1}, v{L+2}", f"v_max3_f32 v11, v11, v{L+3}, v{L+4}", f"v_max3_f32 v11, v11, v{L+5}, v{L+6}", f"v_max_f32 v11, v11, v{L+7}")
    sc = LOG2E * 18 ** -0.5
    A(f"s_mov_b32 s32, {f32(sc)}")
    for w in range(8): A(f"v_sub_f32 v{L+w}, v{L+w}, v11")
    for w in range(8): A(f"v_mul_f32 v{L+w}, s32, v{L+w}")
    for w in range(8): A(f"v_exp_f32 v{L+w}, v{L+w}")
    A(f"v_add_f32 v11, v{L}, v{L+1}")
    for w in range(2, 8): A(f"v_add_f32 v11, v11, v{L+w}")
    A("v_rcp_f32 v11, v11", "s_nop 0")
    for w in range(8): A(f"v_mul_f32 v{L+w}, v11, v{L+w}")
    for w in range(4): A(f"v_cvt_pk_bf16_f32 v{L+w}, v{L+2*w}, v{L+2*w+1}")
    A("s_mov_b32 s33, 0x05040100", "s_mov_b32 s34, 0x07060302")
    A("s_waitcnt lgkmcnt(0)")
    O = 120
    for p in range(4):
        a, b = KB + 2*p*10, KB + (2*p+1)*10
        for i in range(9):
            A(f"v_perm_b32 v{Q+i}, v{b+i}, v{a+i}, s33", f"v_perm_b32 v{a+i}, v{b+i}, v{a+i}, s34")
        for i in range(9):
            A(f"v_dot2_f32_bf16 v{O+2*i}, v{Q+i}, v{L+p}, {'0' if p == 0 else 'v%d' % (O+2*i)}")
            A(f"v_dot2_f32_bf16 v{O+2*i+1}, v{a+i}, v{L+p}, {'0' if p == 0 else 'v%d' % (O+2*i+1)}")
    A("s_nop 2")
    for i in range(9): A(f"v_cvt_pk_bf16_f32 v{24+i}, v{O+2*i}, v{O+2*i+1}")
    A("v_lshrrev_b32 v2, 4, v0", "v_lshlrev_b32 v2, 10, v2", "v_and_b32 v3, 15, v0", "v_lshl_add_u32 v2, v3, 4, v2")
    A("s_mul_i32 s35, s21, 9", "s_lshl_b32 s36, s24, 1", "s_add_u32 s36, s36, s35", "s_add_u32 s37, s36, 1", "s_add_u32 s38, s35, 8")
    for rg in (36, 37, 38):
        A(f"s_lshr_b32 s39, s{rg}, 2", "s_lshl_b32 s39, s39, 12", f"s_and_b32 s{rg}, s{rg}, 3", f"s_lshl_b32 s{rg}, s{rg}, 8", f"s_add_u32 s{rg}, s{rg}, s39")
    A("s_lshl_b32 s39, s24, 2", "s_add_u32 s38, s38, s39")
    A("buffer_store_dwordx4 v[24:27], v2, s[16:19], s36 offen sc1")
    A("buffer_store_dwordx4 v[28:31], v2, s[16:19], s37 offen sc1")
    A("buffer_store_dword v32, v2, s[16:19], s38 offen sc1")
    A("KA_end:")
    return wrap("ka_kernel", A.text(), 144, 144), 4*11264

def gen_k2():
    A = Asm()
    ACC = 0
    SA = 96
    vH = [120, 121, 122, 123]; vW = [124, 125, 126]
    vRw = [127, 128, 129]; vRr = 130; vX = 131; vX2 = 132; vLn = 133
    XR = 136
    TB = 148
    sH, sW, sOo, sX, sOut = 12, 16, 20, 24, 28
    sa, sb, sWave = 40, 41, 42
    A("s_cmp_ge_u32 s2, 256", "s_cbranch_scc1 K2_end")
    A("s_load_dwordx2 s[4:5], s[0:1], 0", "s_load_dwordx2 s[8:9], s[0:1], 56", "s_load_dwordx2 s[6:7], s[0:1], 72")
    A(f"v_lshrrev_b32 v1, 6, v0", f"v_and_b32 v{vLn}, 63, v0", f"v_readfirstlane_b32 s{sWave}, v1")
    ab_decode(A, sa, sb, 43)
    A(f"v_lshlrev_b32 v{vW[0]}, 4, v{vLn}", f"v_add_u32 v{vW[1]}, 4096, v{vW[0]}", f"v_add_u32 v{vW[2]}, 8192, v{vW[0]}")
    for mb in range(4):
        A(f"s_add_u32 s43, s{sWave}, {mb}", "s_and_b32 s43, s43, 3", "s_lshl_b32 s44, s43, 10", f"v_add_u32 v{vH[mb]}, s44, v{vW[0]}")
        if mb: A(f"s_mul_i32 s44, s43, {3*5120}", f"s_add_u32 s44, s44, {86016 + (mb-1)*5120}", f"v_add_u32 v{vRw[mb-1]}, s44, v{vW[0]}")
    A(f"s_mul_i32 s44, s{sWave}, {3*5120}", f"s_add_u32 s44, s44, 86016", f"v_add_u32 v{vRr}, s44, v{vW[0]}")
    A(f"s_lshl_b32 s43, s{sa}, 6", f"s_lshl_b32 s44, s{sWave}, 4", "s_add_u32 s43, s43, s44")
    A(f"v_and_b32 v1, 15, v{vLn}", "v_add_u32 v1, s43, v1", "v_mul_u32_u24 v1, 1152, v1", f"s_mul_i32 s44, s{sb}, 144", "v_add_u32 v1, s44, v1")
    A(f"v_lshrrev_b32 v2, 4, v{vLn}", f"v_lshl_add_u32 v{vX}, v2, 4, v1", "v_and_b32 v2, 1, v2", f"v_lshl_add_u32 v{vX2}, v2, 3, v1")
    A("s_waitcnt lgkmcnt(0)")
    A(f"s_mul_i32 s43, s{sa}, {144*4096}", f"s_mul_i32 s44, s{sWave}, {18*8192}", "s_add_u32 s43, s43, s44", f"s_add_u32 s43, s43, {H_OFF}")
    srd_add(A, sH, "s6", "s7", "s43", 18*8192)
    A(f"s_mul_i32 s43, s{sb}, {81*9216}", f"s_add_u32 s43, s43, {WP_OFF}")
    srd_add(A, sW, "s6", "s7", "s43", 81*9216)
    A(f"s_mul_i32 s43, s{sa}, 73728", f"s_add_u32 s43, s43, {O_OFF}")
    srd_add(A, sOo, "s6", "s7", "s43", 73728)
    srd(A, sX, "s4", "s5", S*D*2); srd(A, sOut, "s8", "s9", S*D*2)
    A(f"s_mul_i32 s45, s{sWave}, {18*9216}")
    A(f"s_lshl_b32 s46, s{sWave}, 10")
    vm = VM()
    def slot(d): return (d % 3)*68
    def Wf(d, k): r = slot(d) + k*4; return f"a[{r}:{r+3}]"
    def Hf(d, s, mb): r = slot(d) + 36 + (s*4+mb)*4; return f"a[{r}:{r+3}]"
    def loads(d):
        o = [(f"s_add_u32 s47, s45, {d*9216}", None), (f"s_mov_b32 s48, {d*8192}", None), (f"s_mov_b32 s49, {d*8192+4096}", None)]
        def lw(k, tag): o.append((f"buffer_load_dwordx4 {Wf(d,k)}, v{vW[k//4]}, s[{sW}:{sW+3}], s47 offen offset:{(k%4)*1024}", tag))
        lw(8, ("L", d, 0))
        for s in range(2):
            for k in range(4): lw(s*4+k, ("L", d, s))
            for mb in range(4): o.append((f"buffer_load_dwordx4 {Hf(d,s,mb)}, v{vH[mb]}, s[{sH}:{sH+3}], s{48+s} offen", ("L", d, s)))
        return o
    def emit(ops):
        for ins, tag in ops:
            A(ins)
            if tag is not None: vm.issue(tag)
    wo_dma = []
    for k in range(21):
        wo_dma += [(f"s_add_u32 m0, s46, {k*4096}", None), (f"s_add_u32 s47, s46, {72*9216 + k*4096}", None),
                   (f"buffer_load_dwordx4 v{vW[0]}, s[{sW}:{sW+3}], s47 offen lds", ("WO",))]
    OB = 204 - 68*0
    def Of(s): return f"a[{s*4}:{s*4+3}]" if s < 17 else "a[204:207]"
    o_ld = []
    for s in range(18):
        o_ld += [(f"s_mov_b32 s48, {s*4096}", None), (f"buffer_load_dwordx4 {Of(s)}, v{vH[0]}, s[{sOo}:{sOo+3}], s48 offen", ("O", s))]
    x_ld = [(f"buffer_load_dwordx4 v[{XR}:{XR+3}], v{vX}, s[{sX}:{sX+3}], 0 offen", ("X",)),
            (f"buffer_load_dwordx4 v[{XR+4}:{XR+7}], v{vX}, s[{sX}:{sX+3}], 0 offen offset:64", ("X",)),
            (f"buffer_load_dwordx2 v[{XR+8}:{XR+9}], v{vX2}, s[{sX}:{sX+3}], 0 offen offset:128", ("X",))]
    emit(loads(0)); emit(loads(1))
    for d in range(18):
        if d + 2 < 18: side = loads(d + 2)
        elif d == 16: side = wo_dma
        else: side = o_ld + x_ld
        mf = []
        for s in range(2):
            for be in list(range(4)) + [4]:
                for mb in range(4):
                    blk = be if be < 4 else 4 + s
                    a = ACC + (blk*4+mb)*4
                    first = d == 0 and (s == 0 or be == 4)
                    wf = Wf(d, s*4+be) if be < 4 else Wf(d, 8)
                    mf.append((s, f"v_mfma_f32_16x16x32_bf16 v[{a}:{a+3}], {wf}, {Hf(d,s,mb)}, {'0' if first else 'v[%d:%d]' % (a, a+3)}"))
        n = len(mf); k = 0
        for i, (s, m) in enumerate(mf):
            if i % 20 == 0:
                A(f"s_waitcnt vmcnt({vm.wait_for(lambda t: t[0] == 'L' and (t[1], t[2]) <= (d, s))})")
            A(m)
            k1 = -(-(i+1)*len(side)//n)
            while k1 < len(side) and side[k1-1][1] is None and k1 > k: k1 += 1
            emit(side[k:k1]); k = max(k, k1)
    A("s_nop 7")
    A(f"v_cmp_gt_u32 vcc, 32, v{vLn}", "s_nop 1")
    for mb in range(4):
        for i in range(4):
            A(f"v_cndmask_b32 v{ACC+(16+mb)*4+i}, v{ACC+(20+mb)*4+i}, v{ACC+(16+mb)*4+i}, vcc")
    for mb in range(1, 4):
        for blk in range(5):
            a = ACC + (blk*4+mb)*4
            A(f"ds_write_b128 v{vRw[mb-1]}, v[{a}:{a+3}] offset:{blk*1024}")
    A(f"s_waitcnt vmcnt({vm.wait_for(lambda t: t[0] == 'WO')}) lgkmcnt(0)", "s_barrier")
    for mb in range(1, 4):
        for blk in range(5):
            a = ACC + (blk*4+mb)*4
            A(f"ds_read_b128 v[{a}:{a+3}], v{vRr} offset:{(mb-1)*5120 + blk*1024}")
        if mb == 2: A("s_waitcnt lgkmcnt(5)")
    WB = [TB, TB+36]
    A(f"v_add_u32 v{vW[1]}, 0x9000, v{vW[0]}")
    def wrd(dp):
        for k in range(9):
            off = dp*9216 + k*1024
            reg, o2 = (vW[0], off) if off < 65536-1024 else (vW[1], off - 0x9000)
            r_ = WB[dp % 2] + k*4
            A(f"ds_read_b128 v[{r_}:{r_+3}], v{reg} offset:{o2}")
    A("s_waitcnt lgkmcnt(0)")
    wrd(0)
    adds = [f"v_add_f32 v{ACC+blk*16+i}, v{ACC+blk*16+i}, v{ACC+(blk*4+mb)*4+i}" for mb in range(1, 4) for blk in range(5) for i in range(4)]
    for x in adds: A(x)
    for dp in range(9):
        A("s_waitcnt lgkmcnt(0)")
        if dp + 1 < 9: wrd(dp + 1)
        A(f"s_waitcnt vmcnt({vm.wait_for(lambda t: t[0] == 'O' and t[1] <= 2*dp+1)})")
        for s in range(2):
            for be in range(5):
                blk = be if be < 4 else 4 + s
                a = SA + blk*4
                k = s*4+be if be < 4 else 8
                r_ = WB[dp % 2] + k*4
                first = dp == 0 and (s == 0 or be == 4)
                A(f"v_mfma_f32_16x16x32_bf16 v[{a}:{a+3}], v[{r_}:{r_+3}], {Of(2*dp+s)}, {'0' if first else 'v[%d:%d]' % (a, a+3)}")
    A("s_nop 7")
    for i in range(4): A(f"v_cndmask_b32 v{SA+16+i}, v{SA+20+i}, v{SA+16+i}, vcc")
    for base_ in (ACC + 64, SA + 16):
        for i in range(4): A(f"v_mov_b32 v{TB+i}, v{base_+i}")
        A("s_nop 1")
        for i in range(4): A(f"v_permlane32_swap_b32 v{base_+i}, v{TB+i}")
        A("s_nop 1")
        for i in range(4): A(f"v_add_f32 v{base_+i}, v{base_+i}, v{TB+i}")
    A("s_waitcnt vmcnt(0)")
    for blk in range(5):
        y = ACC + blk*16; s_ = SA + blk*4; xr = XR + blk*2
        for i in range(4): A(f"v_mul_f32 v{TB+i}, {f32(-LOG2E)}, v{y+i}")
        for i in range(4): A(f"v_exp_f32 v{TB+i}, v{TB+i}")
        for i in range(4): A(f"v_add_f32 v{TB+i}, 1.0, v{TB+i}")
        for i in range(4): A(f"v_rcp_f32 v{TB+i}, v{TB+i}")
        for i in range(4): A(f"v_mul_f32 v{y+i}, v{y+i}, v{s_+i}")
        A(f"v_lshlrev_b32 v{TB+4}, 16, v{xr}", f"v_and_b32 v{TB+5}, 0xffff0000, v{xr}", f"v_lshlrev_b32 v{TB+6}, 16, v{xr+1}", f"v_and_b32 v{TB+7}, 0xffff0000, v{xr+1}")
        for i in range(4): A(f"v_fmac_f32 v{TB+4+i}, v{y+i}, v{TB+i}")
        A(f"v_cvt_pk_bf16_f32 v{xr}, v{TB+4}, v{TB+5}", f"v_cvt_pk_bf16_f32 v{xr+1}, v{TB+6}, v{TB+7}")
    A(f"buffer_store_dwordx4 v[{XR}:{XR+3}], v{vX}, s[{sOut}:{sOut+3}], 0 offen")
    A(f"buffer_store_dwordx4 v[{XR+4}:{XR+7}], v{vX}, s[{sOut}:{sOut+3}], 0 offen offset:64")
    A("s_mov_b64 exec, vcc")
    A(f"buffer_store_dwordx2 v[{XR+8}:{XR+9}], v{vX2}, s[{sOut}:{sOut+3}], 0 offen offset:128")
    A("K2_end:")
    return wrap("k2_kernel", A.text(), 464, 256), 86016 + 12*5120

def build(**kw):
    ks = [("k0_kernel", gen_k0()), ("k1_kernel", gen_k1(**kw)), ("ka_kernel", gen_ka()), ("k2_kernel", gen_k2())]
    hdr = "".join(f"; @launch kernel={n} grid=(256,1,1) block=(256,1,1) lds={l}\n" for n, (_, l) in ks)
    return hdr + '.amdgcn_target "amdgcn-amd-amdhsa--gfx950"\n' + "".join(t for _, (t, _) in ks)

if __name__ == "__main__":
    out = sys.argv[1] if len(sys.argv) > 1 else f"cdna_kernels/{NAME}.s"
    open(out, "w").write(build())
    print("wrote", out)
```

```python
import struct
LOG2E = 1.4426950408889634
def f32(x): return "0x%08x" % struct.unpack("<I", struct.pack("<f", x))[0]

class Cfg:
    STAMP = False
    STAMP_OFF = 200 << 20
    NST = 14
    STAMP_WAVE = 0

class Asm:
    def __init__(s): s.l = []; s.q = []; s.uid = 0
    def __call__(s, *t):
        for x in t: s.l.append("    " + x if not x.endswith(":") else x)
    def stamp(s, i):
        if Cfg.STAMP: s(f"s_memtime s[{70+2*i}:{71+2*i}]")
    def text(s): return "\n".join(s.l)
    def op(s, ins, tag=None):
        s(ins)
        if tag is not None: s.q.append(tag)
    def ops(s, lst):
        for o in lst: s.op(o[0], o[-1])
    def vmn(s, pred):
        idx = max((i for i, t in enumerate(s.q) if pred(t)), default=-1)
        assert idx >= 0, "nothing to wait for"
        return min(63, len(s.q) - 1 - idx)
    def vmwait(s, pred): s(f"s_waitcnt vmcnt({s.vmn(pred)})")
    def label(s, p): s.uid += 1; return f"{p}_{s.uid}"

def srd(A, d, lo, hi, size):
    A(f"s_mov_b32 s{d}, {lo}", f"s_mov_b32 s{d+1}, {hi}", f"s_mov_b32 s{d+2}, {size}", f"s_mov_b32 s{d+3}, 0x20000")
def srd_add(A, d, lo, hi, off, size):
    A(f"s_add_u32 s{d}, {lo}, {off}", f"s_addc_u32 s{d+1}, {hi}, 0", f"s_mov_b32 s{d+2}, {size}", f"s_mov_b32 s{d+3}, 0x20000")
def R(d): return f"s[{d}:{d+3}]"

def wrap(name, body, vgpr, accum, kidx, swave, sgpr=102):
    if Cfg.STAMP:
        n = Cfg.NST
        body = "    s_memrealtime s[98:99]\n    s_memtime s[100:101]\n" + "".join(f"    s_mov_b32 s{70+2*i}, 0\n" for i in range(n)) + body + f"""
    s_waitcnt vmcnt(0) lgkmcnt(0)
    s_cmp_lg_u32 s{swave}, {Cfg.STAMP_WAVE}
    s_cbranch_scc1 {name}_nostamp
    s_cmp_ge_u32 s2, 256
    s_cbranch_scc1 {name}_nostamp
    s_memrealtime s[4:5]
    s_memtime s[6:7]
    s_load_dwordx2 s[8:9], s[0:1], 72
    s_mov_b64 exec, 1
    s_waitcnt lgkmcnt(0)
    v_mov_b32 v0, s98
    v_mov_b32 v1, s4
    v_mov_b32 v2, s100
    v_mov_b32 v3, s6
""" + "".join(f"    v_mov_b32 v{4+i}, s{70+2*i}\n" for i in range(n)) + f"""
    s_lshl_b32 s10, s2, 7
    s_add_u32 s10, s10, {Cfg.STAMP_OFF + kidx*32768}
    v_mov_b32 v20, s10
""" + "".join(f"    global_store_dwordx4 v20, v[{4*i}:{4*i+3}], s[8:9] offset:{16*i}\n" for i in range(5)) + f"{name}_nostamp:\n"
    return f"""
.text
.globl {name}
.p2align 8
.type {name},@function
{name}:
{body}
    s_endpgm
.section .rodata,"a"
.p2align 6
.amdhsa_kernel {name}
  .amdhsa_next_free_vgpr {vgpr}
  .amdhsa_next_free_sgpr {sgpr}
  .amdhsa_accum_offset {accum}
  .amdhsa_group_segment_fixed_size 0
  .amdhsa_kernarg_size 80
  .amdhsa_user_sgpr_count 2
  .amdhsa_user_sgpr_kernarg_segment_ptr 1
  .amdhsa_system_sgpr_workgroup_id_x 1
.end_amdhsa_kernel
"""

class Frags:
    def __init__(s, A, RING, NB, DL, waitevery=1):
        s.A, s.RING, s.NB, s.DL, s.we = A, RING, NB, DL, waitevery
        s.fr = []; s.side = {}; s.base = {}; s.marks = {}
    def add(s, areg, off, second, mf, pre=None):
        s.fr.append(dict(areg=areg, off=off, second=second, mf=mf, pre=list(pre or []), head=[]))
    def mark(s, k): s.marks[k] = len(s.fr)
    def sync(s, t, pred, barrier=True):
        if pred is not None: s.fr[t]["pre"].append(("WAIT", pred))
        if barrier: s.fr[t]["pre"].append("s_barrier")
    def put(s, slot, items):
        assert 0 <= slot < len(s.fr), slot
        s.side.setdefault(slot, []).extend(items)
    def spread(s, st, en, items):
        tot = sum(c for _, c, _ in items); cum = 0
        for it in items:
            s.put(st + int(cum * (en - st) / tot), [it]); cum += it[1]
    def _item(s, x):
        A = s.A
        if isinstance(x, str): A(x)
        elif x[0] == "WAIT": A.vmwait(x[-1])
        elif x[0] == "CALL": x[-1]()
        else: A.op(x[0], x[-1])
    def _reads(s, t):
        A = s.A; fr = s.fr[t]
        for x in fr["pre"]: s._item(x)
        b = s.base.get(fr["areg"], 0)
        if not (0 <= fr["off"] - b and fr["off"] - b + fr["second"] <= 65535):
            nb = (fr["off"] // 32768) * 32768
            A(f"v_add_u32 v{fr['areg']}, {(nb - b) & 0xffffffff}, v{fr['areg']}"); s.base[fr["areg"]] = b = nb
        r_ = s.RING + (t % s.NB)*4
        A(f"ds_read_b64_tr_b16 v[{r_}:{r_+1}], v{fr['areg']} offset:{fr['off']-b}")
        A(f"ds_read_b64_tr_b16 v[{r_+2}:{r_+3}], v{fr['areg']} offset:{fr['off']-b+fr['second']}")
    def emit(s):
        A = s.A; NF = len(s.fr); DL = s.DL
        for t in range(min(DL, NF)): s._reads(t)
        for t in range(NF):
            fr = s.fr[t]
            for x in fr["head"]: s._item(x)
            if t % s.we == 0:
                last = min(t + s.we - 1, NF - 1)
                issued = min(t + DL - 1, NF - 1)
                A(f"s_waitcnt lgkmcnt({2*(issued - last)})")
            r_ = s.RING + (t % s.NB)*4
            side = s.side.get(t, [])
            n = len(fr["mf"]); ng = max(1, n - 1)
            tot = sum(x[1] for x in side)
            gaps = [[] for _ in range(ng)]; cum = 0
            for it in side:
                gi = min(ng - 1, int(cum * ng / max(tot, 1))) if tot > 2 else 0
                gaps[gi].append(it); cum += it[1]
            for k, (dst, bsrc, first) in enumerate(fr["mf"]):
                A(f"v_mfma_f32_16x16x32_bf16 {dst}, v[{r_}:{r_+3}], {bsrc}, {'0' if first else dst}")
                if k == 0 and t + DL < NF: s._reads(t + DL)
                if k > 0 or n == 1:
                    for it in gaps[k-1 if n > 1 else 0]: s._item(it)

def interleave(A, code, groups):
    n = len(code); g = len(groups); k = 0
    for i, x in enumerate(code):
        if isinstance(x, str): A(x)
        elif x[0] == "WAIT": A.vmwait(x[-1])
        elif x[0] == "CALL": x[-1]()
        else: A.op(x[0], x[-1])
        while k < g and (k + 1) * n <= (i + 1) * g:
            A.ops(groups[k]); k += 1
    while k < g: A.ops(groups[k]); k += 1
```

```python
import sys
from lib3 import *

NAME = "recurrent_scan__sliding_local_dilated__glu_gated_glu__prompt"
S, D, F = 2048, 576, 4608
XN_OFF = 0;                     XN_SZ = S*D*2
H_OFF = XN_OFF + XN_SZ;         H_SZ = S*F*2
WC_OFF = H_OFF + H_SZ;          WC_SZ = 8*81*9216
QKV_OFF = WC_OFF + WC_SZ;       QKV_SZ = S*1728*2
O_OFF = QKV_OFF + QKV_SZ + 4096; O_SZ = S*D*2
P_OFF = O_OFF + O_SZ;           P_SZ = 256*4*3*2560
OC_OFF = P_OFF + P_SZ;          OC_SZ = 32*36864
FL_OFF = OC_OFF + OC_SZ;        FL_SZ = 32768
WS_USED = FL_OFF + FL_SZ
SPIN_MAX = 200000

def gen_k0(PFPOS=1, PF=1):
    A = Asm()
    A("s_mov_b32 s24, 99")
    A("s_cmp_ge_u32 s2, 256", "s_cbranch_scc1 K0_end")
    A("s_load_dwordx4 s[4:7], s[0:1], 0", "s_load_dwordx2 s[8:9], s[0:1], 16",
      "s_load_dwordx4 s[40:43], s[0:1], 32", "s_load_dwordx2 s[10:11], s[0:1], 72")
    A("v_lshrrev_b32 v1, 6, v0", "v_mov_b32 v40, v0", "v_and_b32 v0, 63, v0", "v_readfirstlane_b32 s24, v1")
    A("v_and_b32 v2, 7, v0", "v_lshrrev_b32 v3, 3, v0")
    A("s_lshl_b32 s25, s2, 3")
    A("v_add_u32 v4, s25, v2", "v_mul_u32_u24 v4, 1152, v4")
    A("v_lshl_add_u32 v5, v3, 4, v4")
    A("s_lshl_b32 s26, s24, 7")
    A("s_lshl_b32 s27, s24, 8", "s_add_u32 s27, s27, s2")
    A("s_waitcnt lgkmcnt(0)")
    A.stamp(0)
    srd(A, 12, "s4", "s5", XN_SZ)
    A("buffer_load_ushort v6, v4, s[12:15], 0 offen")
    A("buffer_load_dwordx4 v[8:11], v5, s[12:15], s26 offen")
    srd(A, 16, "s10", "s11", WS_USED)
    A("s_mov_b32 s23, 0x20000")
    A("s_cmp_ge_u32 s27, 1152", "s_cbranch_scc1 K0_wo")
    A("s_and_b32 s28, s27, 7", "s_lshr_b32 s29, s27, 4")
    A("s_bitcmp1_b32 s27, 3", "s_cselect_b32 s20, s42, s40", "s_cselect_b32 s21, s43, s41", "s_cselect_b32 s30, 1024, 0", f"s_mov_b32 s22, {D*F*2}")
    A("v_mul_u32_u24 v20, 9216, v3", "v_lshl_add_u32 v20, v2, 4, v20")
    A(f"s_mul_i32 s32, s29, {8*9216}", "s_mul_i32 s33, s28, 1152", "s_add_u32 s32, s32, s33", "s_add_u32 s32, s32, 1024")
    A("v_and_b32 v24, 3, v3", "v_lshrrev_b32 v25, 2, v3", "v_lshl_add_u32 v24, v25, 3, v24", "v_lshlrev_b32 v24, 5, v24")
    A("v_and_b32 v25, 1, v2", "v_lshl_add_u32 v24, v25, 4, v24", "v_lshrrev_b32 v25, 1, v2", "v_mul_u32_u24 v25, 36864, v25", "v_add_u32 v41, v24, v25")
    A(f"s_mul_i32 s33, s28, {4*36864}", "s_lshr_b32 s34, s29, 2", "s_lshl_b32 s34, s34, 11", "s_add_u32 s33, s33, s34", "s_add_u32 s33, s33, s30")
    A("s_and_b32 s34, s29, 1", "s_lshl_b32 s34, s34, 7", "s_add_u32 s33, s33, s34", "s_and_b32 s34, s29, 2", "s_lshl_b32 s34, s34, 8", "s_add_u32 s33, s33, s34")
    A(f"s_add_u32 s38, s33, {OC_OFF}")
    A("s_branch K0_pc")
    A("K0_wo:")
    A("s_sub_u32 s35, s27, 1152")
    A("s_mul_i32 s28, s35, 911", "s_lshr_b32 s28, s28, 16")
    A("s_mul_i32 s29, s28, 72", "s_sub_u32 s29, s35, s29", "s_lshr_b32 s30, s29, 3", "s_and_b32 s29, s29, 7")
    A("s_cmp_lt_u32 s35, 648", f"s_cselect_b32 s22, {D*D*2}, 0", "s_mov_b32 s20, s8", "s_mov_b32 s21, s9")
    A("s_lshl_b32 s31, s30, 3")
    A("s_cmp_ge_u32 s28, 8", "s_cbranch_scc1 K0_n8")
    A("s_add_u32 s32, s31, s28", "v_mov_b32 v22, s32", "v_mov_b32 v21, v3")
    A("v_lshlrev_b32 v20, 4, v2")
    A("v_and_b32 v24, 3, v3", "v_lshrrev_b32 v25, 2, v3", "v_lshl_add_u32 v24, v25, 4, v24")
    A("s_and_b32 s32, s28, 3", "s_lshl_b32 s32, s32, 2", "v_add_u32 v24, s32, v24", "v_lshlrev_b32 v24, 5, v24")
    A("v_lshrrev_b32 v25, 1, v2", "v_lshl_add_u32 v24, v25, 10, v24", "v_and_b32 v25, 1, v2", "v_lshl_add_u32 v24, v25, 4, v24")
    A("s_lshr_b32 s32, s28, 2", "s_mul_i32 s32, s32, 4608", "v_add_u32 v41, s32, v24")
    A("s_branch K0_nj")
    A("K0_n8:")
    A("v_lshrrev_b32 v24, 5, v0", "v_bfe_u32 v25, v0, 2, 2", "v_lshl_add_u32 v22, v24, 2, v25", "v_add_u32 v22, s31, v22")
    A("v_and_b32 v21, 3, v0", "v_bfe_u32 v25, v0, 4, 1", "v_lshl_add_u32 v21, v25, 2, v21")
    A("v_mov_b32 v20, 128")
    A("v_mul_u32_u24 v24, 4608, v24", "v_and_b32 v25, 31, v0", "v_lshl_add_u32 v24, v25, 4, v24", "v_add_u32 v41, 4096, v24")
    A("K0_nj:")
    A("v_lshrrev_b32 v25, 1, v22", "v_mul_u32_u24 v25, 18, v25", "v_and_b32 v26, 1, v22", "v_lshl_add_u32 v25, v26, 3, v25", "v_add_u32 v25, v25, v21")
    A("v_lshrrev_b32 v26, 1, v21", "v_mul_u32_u24 v26, 18, v26", "v_and_b32 v27, 1, v21", "v_add3_u32 v26, v26, v27, 16")
    A("v_and_b32 v23, 7, v22", "v_mul_u32_u24 v23, 72, v23", "v_add_u32 v26, v26, v23")
    A("v_cmp_le_u32 vcc, 64, v22", "s_mul_i32 s32, s29, 144", "s_nop 0", "v_cndmask_b32 v25, v25, v26, vcc")
    A("v_mul_u32_u24 v25, 1152, v25", "v_add_u32 v20, v20, v25")
    A("s_mul_i32 s38, s29, 81", "s_add_u32 s38, s38, s30", "s_add_u32 s38, s38, 72", "s_mul_i32 s38, s38, 9216", f"s_add_u32 s38, s38, {WC_OFF}")
    A("K0_pc:")
    A("buffer_load_dwordx4 v[44:47], v20, s[20:23], s32 offen")
    def prefetch():
        A("s_and_b32 s33, s2, 7", "s_lshr_b32 s34, s2, 3", "s_mul_i32 s35, s34, 18")
        A("v_cmp_gt_u32 vcc, 144, v40", "v_subrev_u32 v26, 144, v40", "s_nop 0", "v_cndmask_b32 v26, v26, v40, vcc")
        A("v_mov_b32 v28, s42", "v_mov_b32 v29, s43", "v_mov_b32 v30, s40", "v_mov_b32 v31, s41")
        A("v_cndmask_b32 v28, v28, v30, vcc", "v_cndmask_b32 v29, v29, v31, vcc")
        A("v_lshrrev_b32 v27, 3, v26", "v_add_u32 v27, s35, v27", "v_mul_u32_u24 v27, 9216, v27", "v_lshl_add_u32 v27, v2, 7, v27")
        A("s_mul_i32 s36, s33, 1152", "v_add_u32 v27, s36, v27")
        A("v_subrev_u32 v26, 288, v40", "v_lshrrev_b32 v30, 2, v26", "v_add_u32 v30, s35, v30", "v_mul_u32_u24 v30, 3456, v30")
        A("v_and_b32 v31, 3, v26", "v_lshl_add_u32 v31, v31, 3, s33", "v_min_u32 v31, 26, v31", "v_lshl_add_u32 v30, v31, 7, v30")
        A("v_cmp_le_u32 vcc, 288, v40", "v_mov_b32 v31, s6", "v_mov_b32 v26, s7")
        A("v_cndmask_b32 v27, v27, v30, vcc", "v_cndmask_b32 v28, v28, v31, vcc", "v_cndmask_b32 v29, v29, v26, vcc")
        A("s_getpc_b64 s[36:37]", "K0_pcl:", "s_add_u32 s36, s36, k12_kernel-K0_pcl", "s_addc_u32 s37, s37, 0")
        A("v_subrev_u32 v30, 384, v40", "v_lshl_add_u32 v30, s34, 4, v30", "v_lshlrev_b32 v30, 7, v30", "v_min_u32 v30, K12_end-k12_kernel, v30")
        A("v_cmp_le_u32 vcc, 384, v40", "v_mov_b32 v31, s36", "v_mov_b32 v26, s37")
        A("v_cndmask_b32 v27, v27, v30, vcc", "v_cndmask_b32 v28, v28, v31, vcc", "v_cndmask_b32 v29, v29, v26, vcc")
        A("v_add_co_u32 v28, vcc, v28, v27", "s_nop 1", "v_addc_co_u32 v29, vcc, 0, v29, vcc")
        A("v_cmp_gt_u32 s[36:37], 360, v40" if False else "v_cmp_gt_u32 vcc, 360, v40", "s_mov_b64 s[36:37], vcc")
        A("v_subrev_u32 v30, 384, v40", "v_cmp_gt_u32 vcc, 16, v30", "s_or_b64 vcc, vcc, s[36:37]")
        A("s_and_saveexec_b64 s[36:37], vcc", "s_cbranch_execz K0_pfx")
        A("global_load_dword v48, v[28:29], off")
        A("K0_pfx:", "s_mov_b64 exec, s[36:37]")
    if PF and PFPOS == 0: prefetch()
    A.stamp(1)
    A("s_waitcnt vmcnt(1)")
    A.stamp(2)
    A("v_lshlrev_b32 v6, 16, v6")
    for i in range(4): A(f"v_lshlrev_b32 v{32+2*i}, 16, v{8+i}", f"v_and_b32 v{33+2*i}, 0xffff0000, v{8+i}")
    for i in range(8): A(f"v_sub_f32 v{12+i}, v{32+i}, v6")
    A("v_add_f32 v28, v12, v13", "v_mul_f32 v29, v12, v12", "v_add_f32 v30, v14, v15", "v_mul_f32 v31, v13, v13")
    A("v_add_f32 v26, v16, v17", "v_fmac_f32 v29, v14, v14", "v_add_f32 v27, v18, v19", "v_fmac_f32 v31, v15, v15")
    A("v_add_f32 v28, v28, v30", "v_fmac_f32 v29, v16, v16", "v_add_f32 v26, v26, v27", "v_fmac_f32 v31, v17, v17")
    A("v_fmac_f32 v29, v18, v18", "v_fmac_f32 v31, v19, v19", "v_add_f32 v28, v28, v26", "v_add_f32 v29, v29, v31")
    A("v_mul_u32_u24 v26, 80, v2", "s_lshl_b32 s33, s24, 3")
    A("v_add_f32_dpp v28, v28, v28 row_ror:8 row_mask:0xf bank_mask:0xf", "v_add_f32_dpp v29, v29, v29 row_ror:8 row_mask:0xf bank_mask:0xf")
    for op in ("v_permlane16_swap_b32", "v_permlane32_swap_b32"):
        A("v_mov_b32 v30, v28", "v_mov_b32 v31, v29", "s_nop 1")
        A(f"{op} v28, v30", f"{op} v29, v31", "s_nop 1")
        A("v_add_f32 v28, v28, v30", "v_add_f32 v29, v29, v31")
    A("v_add_u32 v27, s33, v26")
    A("ds_write_b64 v27, v[28:29]")
    A("s_waitcnt lgkmcnt(0)", "s_barrier")
    A.stamp(3)
    for k in range(4): A(f"ds_read_b128 v[{52+4*k}:{55+4*k}], v26 offset:{16*k}")
    A("ds_read_b64 v[28:29], v26 offset:64")
    A("v_lshrrev_b32 v20, 2, v3", "v_lshlrev_b32 v20, 12, v20", "v_and_b32 v21, 3, v3", "v_lshl_add_u32 v20, v21, 8, v20", "v_lshl_add_u32 v20, v2, 4, v20")
    A("s_lshr_b32 s32, s2, 3", "s_mul_i32 s32, s32, 73728")
    A("s_lshr_b32 s33, s2, 1", "s_and_b32 s33, s33, 3", "s_lshl_b32 s33, s33, 10", "s_add_u32 s32, s32, s33")
    A("s_and_b32 s33, s2, 1", "s_lshl_b32 s33, s33, 7", "s_add_u32 s32, s32, s33")
    A("s_lshl_b32 s33, s24, 13", "s_add_u32 s33, s33, s32", f"s_add_u32 s33, s33, {XN_OFF}")
    A("s_waitcnt lgkmcnt(0)")
    for k in range(4): A(f"v_add_f32 v{52+4*k}, v{52+4*k}, v{54+4*k}", f"v_add_f32 v{53+4*k}, v{53+4*k}, v{55+4*k}")
    A("v_add_f32 v52, v52, v56", "v_add_f32 v53, v53, v57", "v_add_f32 v60, v60, v64", "v_add_f32 v61, v61, v65")
    A("v_add_f32 v28, v28, v52", "v_add_f32 v29, v29, v53", "v_add_f32 v28, v28, v60", "v_add_f32 v29, v29, v61")
    A(f"v_mul_f32 v28, {f32(1/576)}, v28", f"v_mul_f32 v29, {f32(1/576)}, v29")
    A("v_fma_f32 v29, -v28, v28, v29", "v_max_f32 v29, 0, v29", "v_add_f32 v28, v28, v6")
    A("v_cvt_pk_bf16_f32 v30, v28, v29", "v_lshlrev_b32 v28, 16, v30", "v_and_b32 v29, 0xffff0000, v30")
    A(f"v_add_f32 v29, {f32(1e-5)}, v29", "v_cvt_pk_bf16_f32 v29, v29, v29", "v_lshlrev_b32 v29, 16, v29")
    A("v_sqrt_f32 v29, v29")
    for i in range(8): A(f"v_sub_f32 v{32+i}, v{32+i}, v28")
    A("v_cvt_pk_bf16_f32 v29, v29, v29", "v_lshlrev_b32 v29, 16, v29", "v_rcp_f32 v29, v29")
    for i in range(4): A(f"v_cvt_pk_bf16_f32 v{8+i}, v{32+2*i}, v{33+2*i}")
    for i in range(4): A(f"v_lshlrev_b32 v{32+2*i}, 16, v{8+i}", f"v_and_b32 v{33+2*i}, 0xffff0000, v{8+i}")
    for i in range(8): A(f"v_mul_f32 v{32+i}, v{32+i}, v29")
    for i in range(4): A(f"v_cvt_pk_bf16_f32 v{8+i}, v{32+2*i}, v{33+2*i}")
    A("buffer_store_dwordx4 v[8:11], v20, s[16:19], s33 offen sc1")
    A.stamp(4)
    A("s_cmp_ge_u32 s27, 1800", "s_cbranch_scc1 K0_nop")
    A(f"s_waitcnt vmcnt({2 if PF and PFPOS == 0 else 1})" if False else "K0_WAITW")
    A("buffer_store_dwordx4 v[44:47], v41, s[16:19], s38 offen sc1")
    A("K0_nop:")
    A("s_cmp_lg_u32 s24, 8", "s_cbranch_scc1 K0_nofl")
    A("v_mov_b32 v52, 0", "v_mov_b32 v53, 0", "v_mov_b32 v54, 0", "v_mov_b32 v55, 0")
    A("v_lshlrev_b32 v27, 4, v2", "s_lshl_b32 s35, s2, 7", f"s_add_u32 s35, s35, {FL_OFF}")
    A("buffer_store_dwordx4 v[52:55], v27, s[16:19], s35 offen sc1")
    A("K0_nofl:")
    if PF and PFPOS == 1: prefetch()
    A("K0_end:")
    if PF and PFPOS == 0:
        w = "s_cmp_lt_u32 s24, 7\n    s_cbranch_scc1 K0_w2\n    s_waitcnt vmcnt(1)\nK0_w2:"
    else: w = "s_waitcnt vmcnt(1)"
    t = A.text().replace("K0_WAITW", w)
    return wrap("k0_kernel", t, 72, 72, 0, 24), 1024, 576

XV, ACC, RING, NB, STG = 0, 32, 192, 5, 212
def xreg(s, mb):
    return f"a[{s*16+mb*4}:{s*16+mb*4+3}]" if s < 16 else f"v[{XV+(s-16)*16+mb*4}:{XV+(s-16)*16+mb*4+3}]"
def acc(set_, half): return ACC + set_*32 + half*16
def vq(r): return f"v[{r}:{r+3}]"
def aq(r): return f"a[{r}:{r+3}]"
def I(*ins): return [(x, 1, None) for x in ins]

def gen_k12(DL=4, LOOK=2, WE=1, E3END=240, P0=5, WPRE=4, G1STEP=1, EB=(16, 34), FL3=5, CDIST=40, DBG=''):
    A = Asm()
    vAd = [228, 229, 230, 231]; vAo, vAq = 232, 233
    vDg, vQs2, vDq = 234, 235, 236
    vL16, vHo, vQs = 237, 238, 239
    vCs, vCd, vCm, vCt, CD = 240, 241, 242, 243, 244
    T = 192
    sG, sU, sQ, sWd, sWS, sWSq, sWSc, sWSf = 12, 16, 20, 24, 28, 32, 36, 40
    sXp, sOp = 44, 46
    sWave, sLdsW, sT, sT2, sT3, sOffG, bXN, bH, bHodd, bOC, bQK, sCrow, bFA, sCstep = range(48, 62)
    A(f"s_mov_b32 s{sWave}, 99")
    A("s_cmp_ge_u32 s2, 256", "s_cbranch_scc1 K12_end")
    A("s_load_dwordx4 s[8:11], s[0:1], 32", "s_load_dwordx2 s[6:7], s[0:1], 72", "s_load_dwordx2 s[4:5], s[0:1], 8",
      "s_load_dwordx2 s[62:63], s[0:1], 48", f"s_load_dwordx2 s[{sXp}:{sXp+1}], s[0:1], 0", f"s_load_dwordx2 s[{sOp}:{sOp+1}], s[0:1], 56")
    A(f"v_lshrrev_b32 v{T}, 6, v0", f"v_and_b32 v{T+1}, 63, v0", f"v_readfirstlane_b32 s{sWave}, v{T}")
    ln = T+1
    A(f"v_lshlrev_b32 v{vL16}, 4, v{ln}")
    sx, si, sc = 64, 65, 66
    A(f"s_and_b32 s{sx}, s2, 7", f"s_lshr_b32 s{si}, s2, 3", f"s_lshr_b32 s{sc}, s{si}, 3", f"s_and_b32 s{si}, s{si}, 7")
    A(f"v_lshrrev_b32 v{T+7}, 3, v{ln}", f"v_and_b32 v{T+8}, 7, v{ln}", f"v_and_b32 v{T+9}, 2, v{T+7}")
    A(f"s_and_b32 s{sT}, s{sWave}, 1", f"s_lshl_b32 s{sT}, s{sT}, 2", f"v_or_b32 v{T+9}, s{sT}, v{T+9}")
    A(f"v_xor_b32 v{T+10}, v{T+8}, v{T+9}", f"v_lshlrev_b32 v{T+10}, 4, v{T+10}")
    A(f"s_lshl_b32 s{sT}, s{sWave}, 3", f"v_add_u32 v{T+11}, s{sT}, v{T+7}")
    A(f"v_mul_u32_u24 v{vDg}, 9216, v{T+11}", f"v_add_u32 v{vDg}, v{vDg}, v{T+10}")
    A(f"s_mul_i32 s67, s{sx}, 9", f"s_lshl_b32 s68, s{sc}, 1", "s_add_u32 s68, s68, s67")
    A(f"s_lshl_b32 s{sT2}, s68, 7", f"s_sub_u32 s{sT3}, {D*F*2}, s{sT2}")
    A(f"s_lshl_b32 s69, s{si}, 2", f"s_add_u32 s69, s69, s{sWave}")
    A(f"s_mul_i32 s{bXN}, s69, 73728", f"s_add_u32 s{bXN}, s{bXN}, {XN_OFF}")
    A(f"s_lshl_b32 s{sLdsW}, s{sWave}, 10")
    A("s_waitcnt lgkmcnt(0)")
    srd_add(A, sG, "s8", "s9", f"s{sT2}", f"s{sT3}"); srd_add(A, sU, "s10", "s11", f"s{sT2}", f"s{sT3}")
    srd(A, sWS, "s6", "s7", WS_USED)

    def ldsG(grp, s):
        if grp == 0: return s*8192
        if s < 6: return 110592 + s*8192
        if s < 9: return (s-6)*8192
        return 24576 + (s-9)*8192
    QL, OL = 0, 73728
    def dmaG(grp, s, mat):
        o = I(f"s_add_u32 m0, s{sLdsW}, {ldsG(grp, s) + mat*4096}", f"s_mov_b32 s{sOffG}, {s*32*9216 + grp*128}" if mat == 0 else "s_nop 0")
        return o + [(f"buffer_load_dwordx4 v{vDg}, {R((sG,sU)[mat])}, s{sOffG} offen lds", 1, ("G", grp, s))]
    def ldX(s):
        o = [I(f"s_add_u32 s{sT3}, s{bXN}, {s*4096}")] + [[] for _ in range(3)]
        for mb in range(4):
            o[mb].append((f"buffer_load_dwordx4 {xreg(s, mb)}, v{vL16}, {R(sWS)}, s{sT3} offen offset:{mb*1024}", 1, ("X", s)))
        return o
    def dmaO(d):
        return I(f"s_add_u32 m0, s{sLdsW}, {OL + d*4096}", f"s_add_u32 s{sT}, s{bOC}, {d*4096}") + \
               [(f"buffer_load_dwordx4 v{vL16}, {R(sWS)}, s{sT} offen lds", 1, ("O", d))]
    def dmaQ(s):
        return I(f"s_add_u32 m0, s{sLdsW}, {QL + s*4096}", f"s_mov_b32 s{sT}, {s*32*3456}") + \
               [(f"buffer_load_dwordx4 v{vDq}, {R(sQ)}, s{sT} offen lds", 1, ("Q", s))]
    LK = LOOK + 1
    def g1ops(s): return [dmaG(0, s, 0), dmaG(0, s, 1)] + ldX(s)
    for s in range(2):
        for o in g1ops(s): A.ops(o)
    q, r, c, sw, ba = T+2, T+3, T+4, T+5, T+6
    A(f"v_mul_u32_u24 v{vDq}, 3456, v{T+11}", f"v_add_u32 v{vDq}, v{vDq}, v{T+10}")
    A(f"s_lshl_b32 s{sT}, s{sWave}, 5", f"s_lshr_b32 s{sT2}, s2, 3", f"s_add_u32 s{sT}, s{sT}, s{sT2}", f"s_mul_i32 s{sCrow}, s{sT}, 48", f"s_mul_i32 s{sT2}, s{sT2}, 192")
    A(f"s_cmp_lt_u32 s{sT}, 120", f"s_cselect_b32 s{sWd+2}, {0 if 'l' in DBG else F*D*2}, 0", f"s_cselect_b32 s{sWSc+2}, {0 if 'c' in DBG else WS_USED}, 0")
    A(f"s_mov_b32 s{sWd}, s62", f"s_mov_b32 s{sWd+1}, s63", f"s_mov_b32 s{sWd+3}, 0x20000")
    A(f"s_mov_b32 s{sWSc}, s6", f"s_mov_b32 s{sWSc+1}, s7", f"s_mov_b32 s{sWSc+3}, 0x20000")
    A(f"s_cmp_eq_u32 s{sWave}, 3", f"s_cselect_b32 s{sCrow}, s{sT2}, s{sCrow}", f"s_cselect_b32 s{sCstep}, 64, 8", "s_cselect_b64 vcc, -1, 0")
    A(f"v_mul_u32_u24 v{vCs}, 1152, v{T+7}", f"v_lshl_add_u32 v{vCs}, v{T+8}, 4, v{vCs}", f"v_mul_u32_u24 v{T+9}, 1152, v{ln}", f"v_add_u32 v{T+9}, 128, v{T+9}")
    A(f"v_cndmask_b32 v{vCs}, v{vCs}, v{T+9}, vcc", f"s_mul_i32 s{sT}, s{sx}, 144", f"v_add_u32 v{vCs}, s{sT}, v{vCs}")
    A(f"v_lshrrev_b32 v{T+9}, 1, v{T+8}", f"v_lshlrev_b32 v{vCd}, 10, v{T+9}", f"v_lshl_add_u32 v{vCd}, v{T+7}, 5, v{vCd}",
      f"v_and_b32 v{T+9}, 1, v{T+8}", f"v_lshl_add_u32 v{vCd}, v{T+9}, 4, v{vCd}")
    A(f"v_lshrrev_b32 v{T+9}, 5, v{ln}", f"v_add_u32 v{T+9}, 1, v{T+9}", f"v_lshl_add_u32 v{T+9}, v{T+9}, 12, v{vL16}", f"v_cndmask_b32 v{vCd}, v{vCd}, v{T+9}, vcc")
    A(f"s_mul_i32 s{sT}, s{sx}, {81*9216}", f"s_add_u32 s{sT}, s{sT}, {WC_OFF}", f"v_add_u32 v{vCd}, s{sT}, v{vCd}")
    A(f"v_lshrrev_b32 v{q}, 4, v{ln}", f"v_bfe_u32 v{r}, v{ln}, 2, 2", f"v_and_b32 v{c}, 3, v{ln}")
    A(f"v_lshrrev_b32 v{sw}, 1, v{r}", f"v_and_b32 v{ba}, 1, v{q}", f"v_lshl_add_u32 v{sw}, v{ba}, 1, v{sw}")
    A(f"v_lshl_add_u32 v{ba}, v{q}, 3, v{r}", f"v_lshlrev_b32 v{ba}, 7, v{ba}")
    for seg in range(4):
        A(f"v_xor_b32 v{T+7}, {seg}, v{sw}", f"v_lshl_add_u32 v{T+7}, v{T+7}, 5, v{ba}", f"v_lshl_add_u32 v{vAd[seg]}, v{c}, 3, v{T+7}")
    A(f"v_lshlrev_b32 v{T+7}, 1, v{sw}", f"v_xor_b32 v{T+7}, v{T+7}, v{c}", f"v_lshl_add_u32 v{vAq}, v{T+7}, 4, v{ba}")
    A(f"v_and_b32 v{T+7}, 1, v{q}", f"v_lshl_add_u32 v{T+7}, v{T+7}, 2, v{r}", f"v_lshrrev_b32 v{T+8}, 1, v{q}", f"v_lshl_add_u32 v{T+7}, v{T+8}, 4, v{T+7}")
    A(f"v_lshlrev_b32 v{T+7}, 5, v{T+7}", f"v_lshl_add_u32 v{vAo}, v{c}, 3, v{T+7}")
    A(f"s_and_b32 s{sT}, s{sc}, 1", f"s_lshl_b32 s{sT}, s{sT}, 11", f"v_lshl_add_u32 v{vHo}, v{ln}, 3, s{sT}")
    A(f"s_mul_i32 s{bH}, s69, {144*4096}", f"s_add_u32 s{bH}, s{bH}, {H_OFF}")
    A("s_add_u32 s67, s67, 8", f"s_lshl_b32 s{bHodd}, s67, 1", f"s_lshr_b32 s{sT}, s{sc}, 1", f"s_add_u32 s{bHodd}, s{bHodd}, s{sT}",
      f"s_lshl_b32 s{bHodd}, s{bHodd}, 12", f"s_add_u32 s{bHodd}, s{bHodd}, s{bH}")
    A(f"s_lshl_b32 s68, s68, 13", f"s_add_u32 s{bH}, s{bH}, s68")
    A(f"s_lshl_b32 s67, s{sx}, 2", f"s_add_u32 s67, s67, s{sc}")
    A(f"s_mul_i32 s{bOC}, s67, 36864", f"s_add_u32 s{bOC}, s{bOC}, s{sLdsW}", f"s_add_u32 s{bOC}, s{bOC}, {OC_OFF}")
    A(f"s_lshl_b32 s{bFA}, s{si}, 5", f"s_add_u32 s{bFA}, s{bFA}, s67", f"s_lshl_b32 s{bFA}, s{bFA}, 2", f"s_add_u32 s{bFA}, s{bFA}, {FL_OFF + 20480}")
    A(f"s_lshl_b32 s67, s{sc}, 3", f"s_add_u32 s67, s67, s{sx}", "s_min_u32 s68, s67, 26")
    A(f"s_lshl_b32 s{sT}, s68, 7", f"s_sub_u32 s{sT2}, {D*1728*2}, s{sT}")
    srd_add(A, sQ, "s4", "s5", f"s{sT}", f"s{sT2}")
    A("s_cmp_lt_u32 s67, 27", f"s_cselect_b32 s{sT}, {0 if 'q' in DBG else WS_USED}, 0")
    srd(A, sWSq, "s6", "s7", f"s{sT}")
    A(f"s_cmp_eq_u32 s{sWave}, 0", f"s_cselect_b32 s{sT}, {WS_USED}, 0")
    srd(A, sWSf, "s6", "s7", f"s{sT}")
    A(f"s_mul_i32 s{bQK}, s69, {64*3456}", f"s_add_u32 s{bQK}, s{bQK}, {QKV_OFF}", "s_lshl_b32 s68, s68, 7", f"s_add_u32 s{bQK}, s{bQK}, s68")
    A(f"v_and_b32 v{T+7}, 15, v{ln}", f"v_mul_u32_u24 v{T+7}, 3456, v{T+7}", f"v_lshl_add_u32 v{vQs}, v{q}, 4, v{T+7}")
    for s in range(2, LK):
        for o in g1ops(s): A.ops(o)

    Fr = Frags(A, RING, NB, DL, WE)
    def mf(a, s, first): return [(vq(a + mb*4), xreg(s, mb), first) for mb in range(4)]
    for s in range(18):
        Fr.mark(("G1", s))
        for p in range(4):
            for mat in range(2): Fr.add(vAd[p], ldsG(0, s) + mat*4096, 512, mf(acc(p, mat), s, s == 0))
    qset = [4, 0]
    for P in range(2):
        Fr.mark(("Q", P))
        for s in range(18):
            for be in range(2): Fr.add(vAq, QL + s*4096 + be*8, 512, mf(acc(qset[P], be), s, s == 0))
    Fr.mark("O")
    for s in range(18):
        for mat in range(2): Fr.add(vAo, OL + s*2048 + mat*1024, 256, mf(acc(1, mat), s, s == 0))
    g2set = [4, 0, 2, 3]
    for hf in range(2):
        for p in range(4):
            Fr.mark(("G2", hf, p))
            for s in range(hf*9, hf*9+9):
                for mat in range(2): Fr.add(vAd[p], ldsG(1, s) + mat*4096, 512, mf(acc(g2set[p], mat), s, s == 0))

    HR, ACB, NHR, NWR, WRL, STL = 0, 144, 4, 7, 98304, 49152
    vH = [vAo, vAq, vQs2, vDq]; vA, vAh, vF8, vVal, vTm = vQs, vCs, vCd, vCm, vCt
    PD, vSK, vSQ = CD, CD+4, CD+8
    sq, sb, si2, bH2, bW4, bWo, sL2, sL3, sRow = 61, 62, 63, 64, 65, 66, 67, 68, 69
    sX, sOut = sQ, sWd
    order = [0, 2, 4, 6, 9, 11, 13, 15, 8, 17, 1, 3, 5, 7, 10, 12, 14, 16]
    def hreg(p, s, mb): return aq(HR + (p % NHR)*32 + (s*4+mb)*4)
    def addB(Fx, p):
        Fx.mark(("B", p))
        for s in range(2):
            for be in range(5):
                off = WRL + (p % NWR)*9216 + s*4608 + be*1024
                m = [(aq(ACB + (be*4+mb)*4), hreg(p, s, mb), p == 0 and s == 0) for mb in range(4)]
                if be < 4: Fx.add(vA, off, 512, m)
                else: Fx.add(vAh, off, 256, m)
        t = Fx.marks[("B", p)]
        Fx.sync(t, lambda tg, p=p: tg == ("W", p))
        Fx.fr[t]["head"].append(("WAIT", lambda tg, p=p: tg == ("H", p, 0)))
        Fx.fr[t + 5]["head"].append(("WAIT", lambda tg, p=p: tg == ("H", p, 1)))
    def ldH(p):
        o = []
        for s in range(2):
            for mb in range(4):
                g_ = I(f"s_add_u32 s{sT3}, s{bH2}, {order[p]*8192 + s*4096}") if mb == 0 else []
                r_ = HR + (p % NHR)*32 + (s*4+mb)*4
                if order[p] % 9 == 8:
                    g_ += I(f"v_lshrrev_b32 v{vTm}, 1, v{vH[mb]}")
                    g_ += [(f"buffer_load_dwordx2 a[{r_+2*hf}:{r_+2*hf+1}], v{vTm}, {R(sWS)}, s{sT3} offen offset:{hf*2048} sc1", 1, ("H", p, s)) for hf in range(2)]
                else:
                    g_ += [(f"buffer_load_dwordx4 {aq(r_)}, v{vH[mb]}, {R(sWS)}, s{sT3} offen sc1", 1, ("H", p, s))]
                o.append(g_)
        return o
    def dmaW(lds, sreg, imm, tag):
        return [I(f"s_add_u32 s{sT}, s{sreg}, {imm}", f"s_add_u32 m0, s{sL2}, {lds}", f"s_add_u32 s{sOffG}, s{sT}, s{sL2}") +
                [(f"buffer_load_dwordx4 v{vL16}, {R(sWS)}, s{sOffG} offen sc1 lds", 1, tag)],
                [(f"buffer_load_dwordx4 v{vL16}, {R(sWS)}, s{sOffG} offen offset:1024 sc1 lds", 1, tag)],
                I(f"s_add_u32 m0, s{sL3}, {lds}", f"s_add_u32 s{sOffG}, s{sT}, s{sL3}") +
                [(f"s_mov_b64 exec, 0xffff\n    buffer_load_dwordx4 v{vL16}, {R(sWS)}, s{sOffG} offen sc1 lds\n    s_mov_b64 exec, -1", 3, tag)]]
    def ldW(p): return dmaW(WRL + (p % NWR)*9216, bW4, order[p]*9216, ("W", p))
    def ldWo(k): return dmaW(k*9216, bWo, k*9216, ("WO", k))
    for p in range(P0 + 1): addB(Fr, p)
    M = Fr.marks; NF = len(Fr.fr)
    g = lambda hf, p: M[("G2", hf, p)]
    B0 = M[("B", 0)]

    for s in range(0, 18, G1STEP):
        Fr.sync(M[("G1", s)], lambda t, s=s: (t[0] == "X" and t[1] < s+G1STEP) or (t[0] == "G" and t[1] == 0 and t[2] < s+G1STEP))
    Fr.sync(M[("Q", 0)], lambda t: t[0] == "Q" and t[1] < 9)
    Fr.sync(M[("Q", 0)] + 18, lambda t: t[0] == "Q")
    Fr.fr[M[("Q", 1)]]["pre"].append(f"v_xor_b32 v{vAq}, 64, v{vAq}")
    Fr.sync(M["O"], lambda t: t[0] == "O")
    def flagA(level): return [f"v_mov_b32 v{vVal}, {level}", (f"buffer_store_dword v{vVal}, off, {R(sWSf)}, s{bFA} sc1", ("F",))]
    Fr.sync(g(0, 0), lambda t: (t[0] == "G" and t[1] == 1 and t[2] < 9) or t[0] == "S")
    Fr.fr[g(0, 0)]["pre"] += flagA(1)
    Fr.sync(g(1, 0), lambda t: (t[0] == "G" and t[1] == 1) or t[0] == "S")
    Fr.fr[g(1, 0)]["pre"] += flagA(2)
    t3 = M[("B", FL3)]
    Fr.fr[t3]["pre"].insert(0, ("WAIT", lambda t: t[0] == "S"))
    Fr.fr[t3]["pre"] += flagA(3)
    for si_, mk in enumerate([("G1", 0), ("Q", 0), "O", ("G2", 0, 0), ("G2", 1, 0), ("B", 0), ("B", 3)]):
        Fr.fr[M[mk]]["head"].append(("CALL", lambda si_=si_: A.stamp(si_)))
    for s in range(LK, 18):
        for k, o in enumerate(g1ops(s)): Fr.put(M[("G1", s - LK)] + k, o)
    t0 = M[("G1", 18 - LK)]
    for k in range(18): Fr.put(t0 + (3*k)//2, dmaQ(k))
    q0 = M[("Q", 0)]
    for d in range(9): Fr.put(q0 + 14 + 5*d, dmaO(d))
    for k in range(12): Fr.put(q0 + 16 + 5*k, dmaG(1, k//2, k % 2))
    for k in range(6): Fr.put(M["O"] + 4 + 3*k, dmaG(1, 6 + k//2, k % 2))
    for k in range(18): Fr.put(g(0, 0) + 2 + 3*k, dmaG(1, 9 + k//2, k % 2))
    def cload(n):
        o = []
        if n == 3: o += [(f"s_cmp_eq_u32 s{sWave}, 3\n    s_cselect_b32 s{sWd+2}, 0, s{sWd+2}", 2, None)]
        return o + I(f"s_mul_i32 s{sT}, s{sCstep}, {n}", f"s_add_u32 s{sT}, s{sT}, s{sCrow}", f"s_mul_i32 s{sT}, s{sT}, 1152") + \
               [(f"buffer_load_dwordx4 {vq(CD + (n%3)*4)}, v{vCs}, {R(sWd)}, s{sT} offen", 1, ("C", n))]
    def cstore(n):
        o = []
        if n == 3: o += [(f"s_cmp_eq_u32 s{sWave}, 3\n    s_cselect_b32 s{sWSc+2}, 0, s{sWSc+2}", 2, None)]
        return o + I(f"s_mul_i32 s{sT}, s{sCstep}, {n}", f"s_add_u32 s{sT}, s{sT}, s{sCrow}", f"s_and_b32 s{sT3}, s{sT}, 31", f"s_lshl_b32 s{sT3}, s{sT3}, 5",
                 f"s_lshr_b32 s{sT}, s{sT}, 5", f"s_mul_i32 s{sT}, s{sT}, 4608", f"s_add_u32 s{sT}, s{sT}, s{sT3}") + \
               [("WAIT", 1, lambda t, n=n: t == ("C", n)),
                (f"buffer_store_dwordx4 {vq(CD + (n%3)*4)}, v{vCd}, {R(sWSc)}, s{sT} offen sc1", 1, ("S", "c"))]
    c0 = q0 + 5
    for rd in range(2):
        for k in range(3):
            Fr.put(c0 + rd*CDIST + 2*k + 1, cload(rd*3 + k))
            Fr.put(c0 + (rd+1)*CDIST + 2*k, cstore(rd*3 + k))
    assert c0 + 2*CDIST + 4 < g(0, 0) - DL - 8
    NL2E = f32(-LOG2E)
    def epi_gate(set_, sub, store):
        o = []
        for mb in range(4):
            g_ = acc(set_, 0) + mb*4; u = acc(set_, 1) + mb*4
            for i in range(4): o.append((f"v_mul_f32 v{g_+i}, {NL2E}, v{g_+i}", 1, None))
            for i in range(4): o.append((f"v_exp_f32 v{g_+i}, v{g_+i}", 2, None))
            for i in range(4): o.append((f"v_add_f32 v{g_+i}, 1.0, v{g_+i}", 1, None))
            for i in range(4): o.append((f"v_rcp_f32 v{g_+i}, v{g_+i}", 2, None))
            for i in range(4): o.append((f"v_mul_f32 v{u+i}, v{g_+i}, v{u+i}", 1, None))
            d = STG + mb*4 + sub*2
            o += I(f"v_cvt_pk_bf16_f32 v{d}, v{u}, v{u+1}", f"v_cvt_pk_bf16_f32 v{d+1}, v{u+2}, v{u+3}")
            if store is not None:
                if store[0] == "full":
                    if mb == 0: o += I(f"s_add_u32 s{sT2}, s{bH}, {store[1]}")
                    o.append((f"buffer_store_dwordx4 {vq(STG+mb*4)}, v{vL16}, {R(sWS)}, s{sT2} offen offset:{mb*1024} sc1", 1, ("S", "h")))
                else:
                    o.append((f"buffer_store_dwordx2 v[{d}:{d+1}], v{vHo}, {R(sWS)}, s{bHodd} offen offset:{mb*512} sc1", 1, ("S", "h")))
        return o
    def epi_q(set_, P):
        o = []
        for mb in range(4):
            a0 = acc(set_, 0) + mb*4; a1 = acc(set_, 1) + mb*4
            o += I(f"v_cvt_pk_bf16_f32 v{a0}, v{a0}, v{a0+1}", f"v_cvt_pk_bf16_f32 v{a0+1}, v{a0+2}, v{a0+3}",
                   f"v_cvt_pk_bf16_f32 v{a0+2}, v{a1}, v{a1+1}", f"v_cvt_pk_bf16_f32 v{a0+3}, v{a1+2}, v{a1+3}", f"s_add_u32 s{sT2}, s{bQK}, {mb*16*3456}")
            o.append((f"buffer_store_dwordx4 {vq(a0)}, v{vQs}, {R(sWSq)}, s{sT2} offen offset:{P*64} sc1", 1, ("S", "q")))
        return o
    e0 = q0 + 1
    span = (E3END - e0 - 8) // 4
    assert e0 + span <= M[("Q", 1)] and e0 + 2*span <= M["O"] and e0 + 2*span >= M[("Q", 1)] + 2
    assert E3END <= g(0, 0) - DL
    Fr.spread(e0, e0 + span, epi_gate(0, 0, None))
    Fr.spread(e0 + span, e0 + 2*span, epi_gate(1, 1, ("full", 0)))
    Fr.spread(e0 + 2*span, e0 + 2*span + 4, epi_q(4, 0))
    Fr.spread(e0 + 2*span + 4, e0 + 3*span + 4, epi_gate(2, 0, None))
    Fr.spread(e0 + 3*span + 4, E3END - 4, epi_gate(3, 1, ("full", 4096)))
    Fr.spread(E3END - 4, E3END, epi_q(0, 1))
    Fr.spread(g(0, 0) + 2, g(0, 0) + 36, epi_gate(1, 0, ("half",)))
    Fr.spread(g(1, 1) + 2, g(1, 1) + 28, epi_gate(4, 0, None))
    Fr.spread(g(1, 1) + 28, B0, epi_gate(0, 1, ("full", 8192)))
    Fr.spread(B0, B0 + EB[0], epi_gate(2, 0, None))
    Fr.spread(B0 + max(EB[0], 2), B0 + EB[1], epi_gate(3, 1, ("full", 12288)))
    assert B0 + EB[1] <= t3 - DL
    su = []
    su += I(f"s_bfe_u32 s{sq}, s2, 0x20001", f"s_bfe_u32 s{sb}, s2, 0x30003", f"s_lshr_b32 s{si2}, s2, 6", f"s_and_b32 s{sL2}, s2, 1", f"s_lshl_b32 s{sL2}, s{sL2}, 2", f"s_add_u32 s{si2}, s{si2}, s{sL2}")
    for mb in range(4):
        su += I(f"s_add_u32 s{sL2}, s{sq}, {mb}", f"s_and_b32 s{sL2}, s{sL2}, 3", f"s_lshl_b32 s{sL2}, s{sL2}, 10", f"v_add_u32 v{vH[mb]}, s{sL2}, v{vL16}")
    su += I(f"v_lshrrev_b32 v{vA}, 1, v{vL16}")
    su += I(f"v_lshrrev_b32 v{vTm}, 6, v{vL16}", f"v_lshlrev_b32 v{vTm}, 4, v{vTm}", f"v_and_b32 v{vAh}, 8, v{vA}", f"v_add_u32 v{vAh}, v{vAh}, v{vTm}")
    su += I(f"s_lshl_b32 s{sL2}, s{si2}, 2", f"s_add_u32 s{sRow}, s{sL2}, s{sq}", f"s_lshl_b32 s{sRow}, s{sRow}, 6", f"s_add_u32 s{sL2}, s{sL2}, s{sWave}")
    su += I(f"s_mul_i32 s{bH2}, s{sL2}, {144*4096}", f"s_mul_i32 s{sL2}, s{sq}, {18*8192}", f"s_add_u32 s{bH2}, s{bH2}, s{sL2}", f"s_add_u32 s{bH2}, s{bH2}, {H_OFF}")
    su += I(f"s_mul_i32 s{bWo}, s{sb}, {81*9216}", f"s_add_u32 s{bWo}, s{bWo}, {WC_OFF}", f"s_mul_i32 s{bW4}, s{sq}, {18*9216}", f"s_add_u32 s{bW4}, s{bW4}, s{bWo}", f"s_add_u32 s{bWo}, s{bWo}, {72*9216}")
    su += I(f"s_lshl_b32 s{sL2}, s{si2}, 2", f"s_add_u32 s{sL2}, s{sL2}, s{sq}", f"s_lshl_b32 s{sL2}, s{sL2}, 5", f"s_add_u32 s{sL2}, s{sL2}, {FL_OFF + 20480}",
            f"v_bfe_u32 v{vF8}, v{vL16}, 2, 5", f"v_add_u32 v{vF8}, s{sL2}, v{vF8}")
    su += I(f"s_lshl_b32 s{sL3}, s{sWave}, 6", f"s_sub_u32 s{sL2}, s{sRow}, 14")
    for k in range(4):
        a_, b_, c_ = PD, PD+1, PD+2
        su += I(f"v_lshrrev_b32 v{a_}, 4, v{vL16}", f"v_add_u32 v{a_}, s{sL3}, v{a_}", f"v_add_u32 v{a_}, {256*k}, v{a_}",
                f"v_mul_u32_u24 v{b_}, 5042, v{a_}", f"v_lshrrev_b32 v{b_}, 16, v{b_}", f"v_mul_u32_u24 v{c_}, 13, v{b_}", f"v_sub_u32 v{a_}, v{a_}, v{c_}",
                f"v_mul_u32_u24 v{c_}, 11, v{a_}", f"v_lshrrev_b32 v{c_}, 5, v{c_}", f"v_mul_u32_u24 v{c_}, 12, v{c_}", f"v_lshlrev_b32 v{a_}, 4, v{a_}", f"v_sub_u32 v{a_}, v{a_}, v{c_}",
                f"v_add_u32 v{c_}, s{sL2}, v{b_}", f"v_max_i32 v{c_}, 0, v{c_}", f"v_min_i32 v{c_}, 2047, v{c_}", f"v_mul_u32_u24 v{c_}, 3456, v{c_}", f"v_add_u32 v{vSK+k}, v{c_}, v{a_}",
                f"v_add_u32 v{c_}, s{sRow}, v{b_}", f"v_min_i32 v{c_}, 2047, v{c_}", f"v_mul_u32_u24 v{c_}, 3456, v{c_}", f"v_add_u32 v{vSQ+k}, v{c_}, v{a_}")
    su += I(f"s_lshl_b32 s{sL2}, s{sWave}, 11", f"s_lshl_b32 s{sL3}, s{sWave}, 8", f"s_add_u32 s{sL3}, s{sL3}, 8192")
    su += I(f"s_mov_b32 s{sX}, s{sXp}", f"s_mov_b32 s{sX+1}, s{sXp+1}", f"s_mov_b32 s{sX+2}, {S*D*2}",
            f"s_mov_b32 s{sOut}, s{sOp}", f"s_mov_b32 s{sOut+1}, s{sOp+1}", f"s_mov_b32 s{sOut+2}, {S*D*2}")
    Fr.spread(g(0, 0) + 36, g(1, 0) - 6, su)
    def spin(load, reduce_, level, tag):
        ok, lp = A.label("ok"), A.label("spin")
        A.vmwait(lambda t: t[0] == tag)
        A(*reduce_); A(f"v_cmp_gt_u32 vcc, {level}, v{PD}", f"s_mov_b32 s{sT3}, 0", f"s_cbranch_vccz {ok}")
        A(f"{lp}:", load, f"s_add_u32 s{sT3}, s{sT3}, 1", "s_waitcnt vmcnt(0)", *reduce_)
        A(f"v_cmp_gt_u32 vcc, {level}, v{PD}", f"s_cmp_gt_u32 s{sT3}, {SPIN_MAX}", f"s_cbranch_scc1 {ok}", f"s_cbranch_vccnz {lp}", f"{ok}:")
    ldAll = f"buffer_load_dwordx4 {vq(PD)}, v{vL16}, {R(sWS)}, s{bXN} offen sc1"
    redAll = [f"v_min3_u32 v{PD}, v{PD}, v{PD+1}, v{PD+2}", f"v_min_u32 v{PD}, v{PD}, v{PD+3}"]
    ld8 = f"buffer_load_dword v{PD}, v{vF8}, {R(sWS)}, 0 offen sc1"
    Fr.put(g(1, 0) - 5, I(f"s_mov_b32 s{bXN}, {FL_OFF + 20480}") + [(ldAll, 1, ("P1",))])
    tc = g(1, 0) + 5
    Fr.fr[tc]["head"].append(("CALL", lambda: spin(ldAll, redAll, 1, "P1")))
    pre = []
    for p in range(max(NHR, WPRE)):
        if p < WPRE: pre += ldW(p)
        if p < NHR: pre += ldH(p)
    for k, o in enumerate(pre): Fr.put(tc + (k*(B0 - 2 - tc))//len(pre), o)
    def stage():
        o = []
        for wh, vr, tag in ((0, vSQ, "AQ"), (1, vSK, "AQ"), (2, vSK, "AQ")):
            for k in range(4):
                g_ = I(f"s_mul_i32 s{bOC}, s{sb}, 144", f"s_add_u32 s{bOC}, s{bOC}, {QKV_OFF + wh*1152}") if k == 0 else []
                g_ += I(f"s_add_u32 m0, s{sLdsW}, {STL + wh*16384 + k*4096}", "s_nop 0")
                o.append(g_ + [(f"buffer_load_dwordx4 v{vr+k}, {R(sWS)}, s{bOC} offen sc1 lds", 1, (tag,))])
        return o
    nextW = WPRE
    for p in range(P0 + 1):
        gl = []
        if p == 0: gl += stage()
        if nextW <= p + 3: gl += ldW(nextW); nextW += 1
        if p >= 1: gl += ldH(p + 3)
        for k, o in enumerate(gl): Fr.put(M[("B", p)] + 1 + (k*9)//len(gl), o)
    assert P0 + 3 <= 9
    Fr.put(M[("B", 3)] + 9, [(ld8, 1, ("P2",))])
    Fr.fr[M[("B", 5)]]["head"].append(("CALL", lambda: spin(ld8, [], 2, "P2")))
    Fr.fr[M[("B", P0)]]["pre"].insert(0, ("WAIT", lambda t: t[0] == "AQ"))
    Fr.emit()
    A.stamp(7)

    C = []
    def Cc(*t): C.extend(t)
    Cc(f"v_lshrrev_b32 v1, 4, v{vL16}", f"s_mul_i32 s{bOC}, s{sWave}, 48", f"s_add_u32 s{bOC}, s{bOC}, {STL}")
    Cc(f"v_mul_u32_u24 v2, 208, v1", f"v_add_u32 v2, s{bOC}, v2", f"v_add_u32 v3, s{sRow}, v1")
    Q, KB, L, O = 12, 24, 112, 120
    def rd(dst, off):
        Cc(f"ds_read_b128 v[{dst}:{dst+3}], v2 offset:{off}", f"ds_read_b128 v[{dst+4}:{dst+7}], v2 offset:{off+16}", f"ds_read_b32 v{dst+8}, v2 offset:{off+32}")
    rd(Q, 0)
    for w in range(4): rd(KB + w*10, 16384 + (14 - 2*w)*208)
    Cc("s_waitcnt lgkmcnt(0)")
    for w in range(4, 8): rd(KB + w*10, 16384 + (14 - 2*w)*208)
    def dots(ws):
        for i in range(9):
            for w in ws: Cc(f"v_dot2_f32_bf16 v{L+w}, v{Q+i}, v{KB+w*10+i}, {'0' if i == 0 else 'v%d' % (L+w)}")
    dots(range(4))
    Cc("s_waitcnt lgkmcnt(0)")
    for w in range(4): rd(KB + w*10, 32768 + (14 - 2*w)*208)
    dots(range(4, 8))
    Cc("s_waitcnt lgkmcnt(0)")
    for w in range(4, 8): rd(KB + w*10, 32768 + (14 - 2*w)*208)
    Cc(f"v_mov_b32 v11, {f32(-1e30)}")
    for w in range(1, 8): Cc(f"v_cmp_le_u32 vcc, {2*w}, v3", "s_nop 1", f"v_cndmask_b32 v{L+w}, v11, v{L+w}, vcc")
    Cc(f"v_max3_f32 v11, v{L}, v{L+1}, v{L+2}", f"v_max3_f32 v11, v11, v{L+3}, v{L+4}", f"v_max3_f32 v11, v11, v{L+5}, v{L+6}", f"v_max_f32 v11, v11, v{L+7}")
    for w in range(8): Cc(f"v_sub_f32 v{L+w}, v{L+w}, v11")
    for w in range(8): Cc(f"v_mul_f32 v{L+w}, {f32(LOG2E * 18 ** -0.5)}, v{L+w}")
    for w in range(8): Cc(f"v_exp_f32 v{L+w}, v{L+w}")
    Cc(f"v_add_f32 v11, v{L}, v{L+1}")
    for w in range(2, 8): Cc(f"v_add_f32 v11, v11, v{L+w}")
    Cc("v_rcp_f32 v11, v11", "s_nop 0")
    for w in range(8): Cc(f"v_mul_f32 v{L+w}, v11, v{L+w}")
    for w in range(4): Cc(f"v_cvt_pk_bf16_f32 v{L+w}, v{L+2*w}, v{L+2*w+1}")
    Cc("s_mov_b32 s4, 0x05040100", "s_mov_b32 s5, 0x07060302")
    Cc("s_waitcnt lgkmcnt(0)")
    for p in range(4):
        a, b = KB + 2*p*10, KB + (2*p+1)*10
        for i in range(9): Cc(f"v_perm_b32 v{Q+i}, v{b+i}, v{a+i}, s4", f"v_perm_b32 v{a+i}, v{b+i}, v{a+i}, s5")
        for i in range(9):
            Cc(f"v_dot2_f32_bf16 v{O+2*i}, v{Q+i}, v{L+p}, {'0' if p == 0 else 'v%d' % (O+2*i)}")
            Cc(f"v_dot2_f32_bf16 v{O+2*i+1}, v{a+i}, v{L+p}, {'0' if p == 0 else 'v%d' % (O+2*i+1)}")
    Cc(f"v_lshrrev_b32 v2, 4, v1", "v_lshlrev_b32 v2, 10, v2", f"v_and_b32 v3, 15, v1", "v_lshl_add_u32 v2, v3, 4, v2")
    for i in range(9): Cc(f"v_cvt_pk_bf16_f32 v{24+i}, v{O+2*i}, v{O+2*i+1}")
    Cc(f"s_mul_i32 s4, s{sRow}, 1152", f"s_add_u32 s4, s4, {O_OFF}", "v_lshlrev_b32 v3, 2, v1")
    Cc(f"s_lshl_b32 s5, s{sb}, 13", f"s_lshr_b32 s6, s{sWave}, 1", "s_lshl_b32 s6, s6, 12", "s_add_u32 s5, s5, s6", f"s_and_b32 s6, s{sWave}, 1", "s_lshl_b32 s6, s6, 9", "s_add_u32 s5, s5, s6", "s_add_u32 s5, s5, s4")
    Cc(f"s_lshl_b32 s7, s{sb}, 2", f"s_add_u32 s7, s7, s{sWave}", "s_lshl_b32 s7, s7, 8", "s_add_u32 s7, s7, s4", "s_add_u32 s7, s7, 65536")
    groups = ldH(P0 + 4)
    while nextW < min(18, P0 + NWR): groups += ldW(nextW); nextW += 1
    NWO1 = 4
    for k in range(NWO1): groups += ldWo(k)
    interleave(A, C, groups)
    A.op(f"buffer_store_dwordx4 v[24:27], v2, {R(sWS)}, s5 offen sc1", ("SO",))
    A.op(f"buffer_store_dwordx4 v[28:31], v2, {R(sWS)}, s5 offen offset:256 sc1", ("SO",))
    A.op(f"buffer_store_dword v32, v3, {R(sWS)}, s7 offen sc1", ("SO",))
    A.op(ld8, ("P3",))
    A.stamp(8)

    F2 = Frags(A, RING, NB, DL, WE); F2.base = dict(Fr.base)
    for p in range(P0 + 1, 18): addB(F2, p)
    M2 = F2.marks
    vFo, vFx, vX, vOl = 4, 5, 6, 7
    sFo, sFx, bP, bO, sMt = 4, 5, 6, 7, 8
    su = I(f"s_lshl_b32 s{sMt}, s{si2}, 2", f"s_add_u32 s{sMt}, s{sMt}, s{sWave}")
    su += I(f"s_lshl_b32 s{sFo}, s{sRow}, 1", f"s_lshl_b32 s9, s{sb}, 4", f"s_add_u32 s{sFo}, s{sFo}, s9", f"s_lshl_b32 s9, s{sWave}, 2", f"s_add_u32 s{sFo}, s{sFo}, s9", f"s_add_u32 s{sFo}, s{sFo}, {FL_OFF}")
    su += I(f"s_lshl_b32 s10, s{si2}, 3", f"s_add_u32 s10, s10, s{sb}", "s_lshl_b32 s10, s10, 2", f"s_add_u32 s10, s10, s{sWave}")
    su += I(f"s_mul_i32 s{bP}, s10, 30720", f"s_add_u32 s{bP}, s{bP}, {P_OFF}")
    su += I("s_lshl_b32 s10, s10, 6", f"s_add_u32 s10, s10, {FL_OFF + 4096}", f"s_lshl_b32 s9, s{sq}, 2", f"s_add_u32 s{sFx}, s10, s9")
    su += I(f"v_bfe_u32 v{vFx}, v{vL16}, 2, 4", f"v_add_u32 v{vFx}, s10, v{vFx}")
    su += I(f"s_lshl_b32 s9, s{sMt}, 7", f"s_add_u32 s9, s9, {FL_OFF}", f"v_bfe_u32 v{vFo}, v{vL16}, 2, 7", f"v_add_u32 v{vFo}, s9, v{vFo}")
    su += I(f"s_mul_i32 s{bO}, s{sMt}, 73728", f"s_add_u32 s{bO}, s{bO}, {O_OFF}")
    su += I(f"s_lshl_b32 s9, s{sMt}, 6", f"s_lshl_b32 s10, s{sq}, 4", "s_add_u32 s9, s9, s10")
    su += I("v_and_b32 v2, 15, v1", "v_add_u32 v2, s9, v2", "v_mul_u32_u24 v2, 1152, v2", f"s_mul_i32 s9, s{sb}, 144", "v_add_u32 v2, s9, v2",
            "v_lshrrev_b32 v3, 4, v1", f"v_lshl_add_u32 v{vX}, v3, 3, v2", f"v_mov_b32 v{vVal}, 1",
            "v_and_b32 v2, 15, v1", "v_add_u32 v2, s10, v2", "v_lshlrev_b32 v2, 2, v2", f"v_lshl_add_u32 v{vOl}, v3, 10, v2")
    F2.spread(2, 20, su)
    nextWo = NWO1
    for p in range(P0 + 1, 18):
        gl = []
        if nextW < 18 and nextW <= p + NWR - 2: gl += ldW(nextW); nextW += 1
        if p > P0 + 1 and p + 3 < 18: gl += ldH(p + 3)
        if (nextW >= 18 or p == P0 + 1) and nextWo < 9 and p > P0 + 1: gl += ldWo(nextWo); nextWo += 1
        for k, o in enumerate(gl): F2.put(M2[("B", p)] + 1 + (k*9)//len(gl), o)
    assert nextW == 18
    F2.fr[M2[("B", 7)]]["head"].append(("CALL", lambda: spin(ld8, [], 3, "P3")))
    F2.put(M2[("B", P0 + 4)], [("WAIT", 1, lambda t: t[0] == "SO"), (f"buffer_store_dword v{vVal}, off, {R(sWS)}, s{sFo} sc1", 1, ("F",))])
    ldFo = f"buffer_load_dword v{PD}, v{vFo}, {R(sWS)}, 0 offen sc1"
    ldFx = f"buffer_load_dword v{PD}, v{vFx}, {R(sWS)}, 0 offen sc1"
    F2.put(M2[("B", 15)] + 9, [(ldFo, 1, ("PO",))])
    XR, SA, PB, Y, PK = 8, 20, 40, 100, 40
    F2.put(M2[("B", 16)] + 5, [(f"buffer_load_dwordx2 v[{XR+2*be}:{XR+2*be+1}], v{vX}, {R(sX)}, 0 offen offset:{32*be}", 1, ("X2",)) for be in range(5)])
    F2.fr[M2[("B", 12)]]["head"].append(("CALL", lambda: A.stamp(9)))
    F2.emit()
    A.stamp(10)
    spin(ldFo, [], 1, "PO")
    A("s_nop 4")
    for mb in range(1, 4):
        A(f"s_add_u32 s{sT}, s{sq}, {mb}", f"s_and_b32 s{sT}, s{sT}, 3", f"s_mul_i32 s{sT}, s{sT}, 7680", f"s_add_u32 s{sT}, s{sT}, s{bP}", f"s_add_u32 s{sT}, s{sT}, {(mb-1)*2560}")
        pk = PK + (mb-1)*12
        for be in range(5):
            for i in range(4): A(f"v_accvgpr_read_b32 v{Y+i}, a{ACB + (be*4+mb)*4 + i}")
            A(f"v_cvt_pk_bf16_f32 v{pk+2*be}, v{Y}, v{Y+1}", f"v_cvt_pk_bf16_f32 v{pk+2*be+1}, v{Y+2}, v{Y+3}")
            if be in (1, 3): A.op(f"buffer_store_dwordx4 {vq(pk + 2*be - 2)}, v{vL16}, {R(sWS)}, s{sT} offen offset:{(be//2)*1024} sc1", ("SP",))
        A.op(f"buffer_store_dwordx2 v[{pk+8}:{pk+9}], v{vTm}, {R(sWS)}, s{sT} offen offset:2048 sc1", ("SP",)) if mb > 1 else (
            A(f"v_lshrrev_b32 v{vTm}, 1, v{vL16}"), A.op(f"buffer_store_dwordx2 v[{pk+8}:{pk+9}], v{vTm}, {R(sWS)}, s{sT} offen offset:2048 sc1", ("SP",)))
    def ldO(s):
        o = I(f"s_add_u32 s{sT3}, s{bO}, {s*4096}")
        if s < 16: return o + [(f"buffer_load_dwordx4 {aq(s*4)}, v{vH[0]}, {R(sWS)}, s{sT3} offen sc1", 1, ("O2", s))]
        return o + [(f"buffer_load_dword a{s*4+h}, v{vOl}, {R(sWS)}, s{sT3} offen offset:{h*256} sc1", 1, ("O2", s)) for h in range(4)]
    def tail_line(k): return (ldWo(k) if k >= nextWo else []) + [ldO(2*k), ldO(2*k+1)]
    LT = 4
    for k in range(LT):
        for o in tail_line(k): A.ops(o)
    for i in range(20): A(f"v_accvgpr_read_b32 v{Y+i}, a{ACB + (i//4)*16 + i%4}")
    F3 = Frags(A, RING, NB, DL, WE); F3.base = dict(F2.base)
    for k in range(9):
        F3.mark(k)
        for s in range(2):
            for be in range(5):
                m = [(vq(SA + be*4), aq((2*k+s)*4), k == 0 and s == 0)]
                off = k*9216 + s*4608 + be*1024
                if be < 4: F3.add(vA, off, 512, m)
                else: F3.add(vAh, off, 256, m)
    M3 = F3.marks
    F3.sync(0, lambda t: t[0] == "WO" and t[1] < nextWo)
    for k in range(9):
        if k >= nextWo: F3.sync(M3[k], lambda t, k=k: t == ("WO", k))
        F3.fr[M3[k]]["head"].append(("WAIT", lambda t, k=k: t == ("O2", 2*k+1)))
        if k + LT < 9:
            gl = tail_line(k + LT)
            for j, o in enumerate(gl): F3.put(M3[k] + (j*10)//len(gl), o)
    F3.fr[0]["head"] += [("CALL", lambda: A.stamp(11)), (f"buffer_store_dword v{vVal}, off, {R(sWS)}, s{sFx} sc1", ("F",))]
    F3.put(M3[7], [(ldFx, 1, ("PX",))])
    F3.emit()
    A.stamp(12)
    spin(ldFx, [], 1, "PX")
    A.stamp(13)
    A(f"s_mul_i32 s{sT}, s{sq}, 7680", f"s_add_u32 s{sT}, s{sT}, s{bP}")
    for part in range(3):
        for sl in range(3):
            A(f"s_add_u32 s{sT2}, s{sT}, {sl*2560}")
            r_ = PB + sl*12 + part*4
            if part < 2: A.op(f"buffer_load_dwordx4 {vq(r_)}, v{vL16}, {R(sWS)}, s{sT2} offen offset:{part*1024} sc1", ("P", part))
            else: A.op(f"buffer_load_dwordx2 v[{r_}:{r_+1}], v{vTm}, {R(sWS)}, s{sT2} offen offset:2048 sc1", ("P", part))
    TB = 124
    for be in range(5):
        xr = XR + be*2; u = 140 + be*4
        A(f"v_lshlrev_b32 v{u}, 16, v{xr}", f"v_and_b32 v{u+1}, 0xffff0000, v{xr}", f"v_lshlrev_b32 v{u+2}, 16, v{xr+1}", f"v_and_b32 v{u+3}, 0xffff0000, v{xr+1}")
    for be in range(5):
        y = Y + be*4; s_ = SA + be*4; xr = XR + be*2; u = 140 + be*4
        if be % 2 == 0: A.vmwait(lambda t: t == ("P", be//2))
        for sl in range(3):
            r_ = PB + sl*12 + 2*be
            A(f"v_lshlrev_b32 v{TB}, 16, v{r_}", f"v_and_b32 v{TB+1}, 0xffff0000, v{r_}", f"v_lshlrev_b32 v{TB+2}, 16, v{r_+1}", f"v_and_b32 v{TB+3}, 0xffff0000, v{r_+1}")
            for i in range(4): A(f"v_add_f32 v{y+i}, v{y+i}, v{TB+i}")
        for i in range(4): A(f"v_mul_f32 v{TB+i}, {NL2E}, v{y+i}")
        for i in range(4): A(f"v_exp_f32 v{TB+i}, v{TB+i}")
        for i in range(4): A(f"v_add_f32 v{TB+i}, 1.0, v{TB+i}")
        for i in range(4): A(f"v_rcp_f32 v{TB+i}, v{TB+i}")
        for i in range(4): A(f"v_mul_f32 v{y+i}, v{y+i}, v{s_+i}")
        for i in range(4): A(f"v_fmac_f32 v{u+i}, v{y+i}, v{TB+i}")
        A(f"v_cvt_pk_bf16_f32 v{xr}, v{u}, v{u+1}", f"v_cvt_pk_bf16_f32 v{xr+1}, v{u+2}, v{u+3}")
        if be == 4: A("s_mov_b32 exec_hi, 0")
        A.op(f"buffer_store_dwordx2 v[{xr}:{xr+1}], v{vX}, {R(sOut)}, 0 offen offset:{32*be}", ("SOUT",))
    A("K12_end:")
    return wrap("k12_kernel", A.text(), 512, 256, 1, sWave), WRL + NWR*9216, 256

def build(k0={}, k12={}):
    ks = [("k0_kernel", gen_k0(**k0)), ("k12_kernel", gen_k12(**k12))]
    hdr = "".join(f"; @launch kernel={n} grid=(256,1,1) block=({b},1,1) lds={l}\n" for n, (_, l, b) in ks)
    return hdr + '.amdgcn_target "amdgcn-amd-amdhsa--gfx950"\n' + "".join(t for _, (t, _, _) in ks)

if __name__ == "__main__":
    if len(sys.argv) > 2 and sys.argv[2] == "stamp": Cfg.STAMP = True
    out = sys.argv[1] if len(sys.argv) > 1 else f"cdna_kernels/{NAME}.s"
    open(out, "w").write(build())
    print("wrote", out)
```
